```python
import torch

def _softmax(x, axis=-1):
    return torch.softmax(x, dim=axis)

def _gelu(x):
    return torch.nn.functional.gelu(x, approximate='tanh')

def _silu(x):
    return torch.nn.functional.silu(x)

def _sigmoid(x):
    return torch.sigmoid(x)

def _layernorm(x, axis=-1, eps=1e-05):
    m = x.mean(dim=axis, keepdim=True)
    v = x.var(dim=axis, keepdim=True, unbiased=False)
    return (x - m) / torch.sqrt(v + eps)

def _scatter_add(tgt, idx, src, axis=0):
    return tgt.clone().index_add_(axis, idx, src)

def _segment_sum(src, seg, n):
    out = torch.zeros((n,) + src.shape[1:], dtype=src.dtype)
    return out.index_add_(0, seg, src)

def _pad(x, pw):
    flat = tuple((v for pair in reversed(pw) for v in pair))
    return torch.nn.functional.pad(x, flat)
kernel_name = 'adaLN_cond__grouped_kv_mqa__moe_arch_mod__prompt'

def setup_inputs():

    _w = lambda a: (lambda t: t.to(torch.bfloat16) if t.is_floating_point() else t)(torch.as_tensor(a))

    def _A_setup():
        B, S, D, H = (1, 2048, 640, 32)
        Dh = D // H
        return {'x': _w((lambda *s: torch.randn(*s, dtype=torch.bfloat16) * 0.05)(B, S, D)), 'wq': _w((lambda *s: torch.randn(*s, dtype=torch.bfloat16) * 0.05)(D, H * Dh)), 'wk': _w((lambda *s: torch.randn(*s, dtype=torch.bfloat16) * 0.05)(D, Dh)), 'wv': _w((lambda *s: torch.randn(*s, dtype=torch.bfloat16) * 0.05)(D, Dh)), 'wo': _w((lambda *s: torch.randn(*s, dtype=torch.bfloat16) * 0.05)(H * Dh, D))}
    _A_in = _A_setup()

    def _B_setup():
        B, S, D, F, C = (1, 2048, 640, 1728, 1)
        return {'x': _w((lambda *s: torch.randn(*s, dtype=torch.bfloat16) * 0.05)(B, S, D)), 'w_r': _w((lambda *s: torch.randn(*s, dtype=torch.bfloat16) * 0.05)(D)), 'w_gate': _w((lambda *s: torch.randn(*s, dtype=torch.bfloat16) * 0.05)(D, F)), 'w_up': _w((lambda *s: torch.randn(*s, dtype=torch.bfloat16) * 0.05)(D, F)), 'w_down': _w((lambda *s: torch.randn(*s, dtype=torch.bfloat16) * 0.05)(F, D))}
    _B_in = _B_setup()
    return {'A_x': _A_in['x'], 'A_wq': _A_in['wq'], 'A_wk': _A_in['wk'], 'A_wv': _A_in['wv'], 'A_wo': _A_in['wo'], 'B_x': _B_in['x'], 'B_w_r': _B_in['w_r'], 'B_w_gate': _B_in['w_gate'], 'B_w_up': _B_in['w_up'], 'B_w_down': _B_in['w_down'], 'c': _w((lambda *s: torch.randn(*s, dtype=torch.bfloat16) * 0.1)(1, 640) * 8.0), 'w_mod': _w((lambda *s: torch.randn(*s, dtype=torch.bfloat16) * 0.1)(640, 6 * 640) * 640 ** (-0.5) * 8.0)}

def reference(A_x, A_wq, A_wk, A_wv, A_wo, B_x, B_w_r, B_w_gate, B_w_up, B_w_down, c, w_mod):

    def _A_ref(x, wq, wk, wv, wo):
        B, S, D = x.shape
        H = 32
        Dh = D // H
        q = (lambda x, *d: x.permute(*d))((x @ wq).reshape(B, S, H, Dh), 0, 2, 1, 3)
        k = x @ wk
        v = x @ wv
        scores = torch.einsum('bhqd,bkd->bhqk', q, k) * Dh ** (-0.5)
        p = _softmax(scores, axis=-1)
        o = torch.einsum('bhqk,bkd->bhqd', p, v)
        return (lambda x, *d: x.permute(*d))(o, 0, 2, 1, 3).reshape(B, S, H * Dh) @ wo

    def _B_ref(x, w_r, w_gate, w_up, w_down):
        B, S, D = x.shape
        C = 1
        r = x @ w_r
        idx = torch.argsort(-r, axis=-1)[:, :C]
        idx_e = (lambda x, n, axis: torch.repeat_interleave(x, n, dim=axis))(idx.reshape(B, C, 1), D, axis=2)
        x_sel = (lambda x, i, axis: torch.take_along_dim(x, i, dim=axis))(x, idx_e, axis=1)
        g = _silu(x_sel @ w_gate)
        u = x_sel @ w_up
        y = g * u @ w_down
        r_sel = _sigmoid((lambda x, i, axis: torch.take_along_dim(x, i, dim=axis))(r, idx, axis=1))
        y = y * r_sel.reshape(B, C, 1)
        b_off = (torch.arange(B) * S).reshape(B, 1)
        flat_idx = (idx + b_off).reshape(B * C)
        zero = (x * 0.0).reshape(B * S, D)
        upd = _scatter_add(zero, flat_idx, y.reshape(B * C, D), axis=0)
        return x + upd.reshape(B, S, D)
    x = A_x
    mod = (_silu(c) @ w_mod).reshape(c.shape[0], 6, 1, -1)
    sa, ca, ga, sb, cb, gb = (mod[:, 0].clone(), mod[:, 1].clone(), mod[:, 2].clone(), mod[:, 3].clone(), mod[:, 4].clone(), mod[:, 5].clone())
    h = _layernorm(x, axis=-1) * (1 + ca) + sa
    x = x + ga * _A_ref(h, A_wq, A_wk, A_wv, A_wo)
    h = _layernorm(x, axis=-1) * (1 + cb) + sb
    x = x + gb * _B_ref(h, B_w_r, B_w_gate, B_w_up, B_w_down)
    return x
```

```python
def R(b, n=1):
    return f"v{b}" if n == 1 else f"v[{b}:{b+n-1}]"

def S(b, n=1):
    return f"s{b}" if n == 1 else f"s[{b}:{b+n-1}]"

class Asm:
    def __init__(self):
        self.L = []
        self.vm = []
        self.lg = []
        self.nlab = 0

    def __call__(self, text):
        for ln in text.strip("\n").split("\n"):
            ln = ln.strip()
            if ln:
                self.L.append(ln if ln.endswith(":") else "    " + ln)

    def c(self, text):
        self.L.append("    ; " + text)

    def label(self, base):
        self.nlab += 1
        return f"L_{base}_{self.nlab}"

    def vmem(self, ins, tag=None):
        self(ins)
        self.vm.append(tag)

    def lds(self, ins, tag=None):
        if len(self.lg) >= 15:
            self("s_waitcnt lgkmcnt(13)")
            del self.lg[: len(self.lg) - 13]
        self(ins)
        self.lg.append(tag)

    def _wait(self, q, tags, name, cap):
        if not isinstance(tags, (list, set)):
            tags = [tags]
        idx = [i for i, t in enumerate(q) if t in tags]
        if not idx:
            return
        n = len(q) - 1 - max(idx)
        n = min(n, cap)
        self(f"s_waitcnt {name}({n})")
        del q[: len(q) - n]

    def wvm(self, tags):
        self._wait(self.vm, tags, "vmcnt", 63)

    def wlg(self, tags):
        self._wait(self.lg, tags, "lgkmcnt", 15)

    def vm0(self):
        self("s_waitcnt vmcnt(0)")
        self.vm = []

    def lg0(self):
        self("s_waitcnt lgkmcnt(0)")
        self.lg = []

    def barrier(self):
        self.lg0()
        self("s_barrier")

    def text(self):
        return "\n".join(self.L) + "\n"
```

```python
import sys, struct
from asmlib import Asm, R, S

NAME = "adaLN_cond__grouped_kv_mqa__moe_arch_mod__prompt"
def fbits(x): return struct.unpack("<I", struct.pack("<f", x))[0]
LOG2E = 1.4426950408889634
KSCALE = 20 ** -0.5 * LOG2E

W_EPOCH = 0
W_MODP = 0x1000
W_KVF = 0x10000
W_CAND = 0x12000
W_ACT = 0x13000
W_BASE = 0x16000
W_STATS = 0x20000
W_H2ROW = 0x60000
W_KV = 0xA0000
W_O = 0x100000
W_DBG = 0x400000
W_SIZE = 0x800000
OOB = 0x7f000000
KVT = 3072
L_XS = 0
L_WKV = 81920
L_WQ1 = 107520
L_ST1 = 162816
L_WQ2 = 0
L_MODF = 51200
L_KVP = 56320
L_QP = 58368
L_QS = 81920
QSTR = 208
L_WO = 0
L_FG = 102400
L_FU = 112704
L_PART = 123136
L_MB = 160000
L_WIN = 161792
L_RED = 161920
sB, sW, sTG, sHG, sMT, sKH = 2, 3, 4, 5, 6, 7
X, WQ, WKV, WO, WM, C, WS, OUT, WR, F = 8, 12, 16, 20, 24, 28, 32, 36, 40, 44
sTAG = 48
sSPIN = 49
sT = 50
sKT = 60
sF0, sFSTEP, sFROLE, sM0, sWOFF = 76, 77, 78, 79, 90
sPTR = 80
sSEL0, sSEL1 = 91, 92
sEX = 94
sKEY = 93
sNF = 98
SPIN_MAX = 50000

class Cfg:
    stamps = False
    depth = 2
    prio = [8, 13, 15]
    force_slow = False

def srd(a, base, size):
    a(f"s_mov_b32 {S(base+2)}, {size}\ns_mov_b32 {S(base+3)}, 0x20000")

def gen(cfg):
    a = Asm()
    stamp_n = [0]
    def stamp(name):
        if not cfg.stamps: return
        i = stamp_n[0]; stamp_n[0] += 1
        a.c(f"stamp {i} {name}")
        a(f"s_memrealtime s[96:97]\ns_waitcnt lgkmcnt(0)\nv_writelane_b32 v0, s96, {i}")
        a.lg = []
        cfg.stamp_names.append(name)
    cfg.stamp_names = []

    def spin_begin():
        lab = a.label("spin")
        a(f"s_mov_b32 {S(sSPIN)}, 0\n{lab}:")
        return lab
    def spin_end(lab):
        done = a.label("got")
        a(f"""s_cbranch_vccz {done}
              s_add_u32 {S(sSPIN)}, {S(sSPIN)}, 1
              s_cmp_lt_u32 {S(sSPIN)}, {SPIN_MAX}
              s_cbranch_scc1 {lab}
              {done}:""")
    def if_wave(cond, val):
        lab = a.label("skip")
        a(f"s_cmp_{cond}_u32 {S(sW)}, {val}\ns_cbranch_scc0 {lab}")
        return lab
    def tagcheck(regs, err, t0, t1):
        for k, p in enumerate(regs):
            a(f"""v_perm_b32 {R(t0)}, {R(p+1)}, {R(p)}, {S(sSEL0)}
                  v_perm_b32 {R(t1)}, {R(p+3)}, {R(p+2)}, {S(sSEL1)}
                  v_or_b32 {R(t0)}, {R(t0)}, {R(t1)}""")
            if k == 0: a(f"v_xor_b32 {R(err)}, {S(sTAG)}, {R(t0)}")
            else: a(f"v_xor_b32 {R(t0)}, {S(sTAG)}, {R(t0)}\nv_or_b32 {R(err)}, {R(err)}, {R(t0)}")
        a(f"v_cmp_ne_u32 vcc, 0, {R(err)}")
    def poisoncheck(regs, t):
        regs = list(regs)
        if len(regs) == 1:
            a(f"v_cmp_eq_u32 vcc, -1, {R(regs[0])}"); return
        if len(regs) % 2 == 0:
            a(f"v_max_u32 {R(t)}, {R(regs[0])}, {R(regs[1])}"); rest = regs[2:]
        else:
            a(f"v_max3_u32 {R(t)}, {R(regs[0])}, {R(regs[1])}, {R(regs[2])}"); rest = regs[3:]
        for i in range(0, len(rest), 2):
            a(f"v_max3_u32 {R(t)}, {R(t)}, {R(rest[i])}, {R(rest[i+1])}")
        a(f"v_cmp_eq_u32 vcc, -1, {R(t)}")
    def div10(idx, row, pc):
        a(f"""v_mul_u32_u24 {R(row)}, 6554, {R(idx)}
              v_lshrrev_b32 {R(row)}, 16, {R(row)}
              v_mul_u32_u24 {R(pc)}, 10, {R(row)}
              v_sub_u32 {R(pc)}, {R(idx)}, {R(pc)}""")

    def mod_issue(padd, wraw, craw, t0, so, sout):
        a.c("modulation task: issue loads")
        a(f"""s_and_b32 {S(sT)}, {S(sB)}, 7
              s_lshr_b32 {S(sT+1)}, {S(sB)}, 4
              s_lshl_b32 {S(sT+1)}, {S(sT+1)}, 3
              s_add_u32 {S(sT)}, {S(sT)}, {S(sT+1)}
              s_add_u32 {S(sT)}, {S(sT)}, {padd}
              s_and_b32 {S(sT+1)}, {S(sT)}, 3
              s_lshr_b32 {S(sT)}, {S(sT)}, 2
              s_lshl_b32 {S(sT)}, {S(sT)}, 1
              s_bfe_u32 {S(sT+2)}, {S(sB)}, 0x10003
              s_add_u32 {S(sT)}, {S(sT)}, {S(sT+2)}
              s_mul_i32 {S(so)}, {S(sT+1)}, {160*7680}
              s_lshl_b32 {S(sT+2)}, {S(sT)}, 6
              s_add_u32 {S(so)}, {S(so)}, {S(sT+2)}
              s_mul_i32 {S(sout)}, {S(sT+1)}, 15360
              s_lshl_b32 {S(sT+2)}, {S(sT)}, 7
              s_add_u32 {S(sout)}, {S(sout)}, {S(sT+2)}
              s_add_u32 {S(sout)}, {S(sout)}, {W_MODP}
              s_mul_i32 {S(sT+1)}, {S(sT+1)}, 320
              v_lshrrev_b32 {R(t0)}, 2, v1
              v_mul_u32_u24 {R(t0+1)}, 20, {R(t0)}
              v_mul_u32_u24 {R(t0)}, 76800, {R(t0)}
              v_and_b32 {R(t0+2)}, 3, v1
              v_lshl_add_u32 {R(t0)}, {R(t0+2)}, 4, {R(t0)}""")
        a.vmem(f"buffer_load_dwordx4 {R(craw,4)}, {R(t0+1)}, {S(C,4)}, {S(sT+1)} offen", "c")
        a.vmem(f"buffer_load_dword {R(craw+4)}, {R(t0+1)}, {S(C,4)}, {S(sT+1)} offen offset:16", "c")
        for i in range(10):
            a.vmem(f"buffer_load_dwordx4 {R(wraw+4*i,4)}, {R(t0)}, {S(WM,4)}, {S(so)} offen", ("wm", i))
            if i < 9: a(f"s_add_u32 {S(so)}, {S(so)}, 7680")
    def mod_compute(wraw, craw, lo, hi, acc, t0, sout):
        a.c("modulation task: silu(c), dot products, lane reduction, tagged publish")
        a.wvm("c")
        for i in range(10):
            a(f"v_and_b32 {R(lo+i)}, 0xffff0000, {R(craw+i//2)}" if i & 1 else f"v_lshlrev_b32 {R(lo+i)}, 16, {R(craw+i//2)}")
        for i in range(10): a(f"v_mul_f32 {R(hi+i)}, {hex(fbits(-LOG2E))}, {R(lo+i)}")
        for i in range(10): a(f"v_exp_f32 {R(hi+i)}, {R(hi+i)}")
        for i in range(10): a(f"v_add_f32 {R(hi+i)}, 1.0, {R(hi+i)}")
        for i in range(10): a(f"v_rcp_f32 {R(hi+i)}, {R(hi+i)}")
        for i in range(10): a(f"v_mul_f32 {R(hi+i)}, {R(hi+i)}, {R(lo+i)}")
        for i in range(10): a(f"v_cvt_pk_bf16_f32 {R(lo+i)}, {R(hi+i)}, 0")
        for i in range(10): a(f"v_lshlrev_b32 {R(hi+i)}, 16, {R(lo+i)}")
        a(f"""v_bfe_u32 {R(t0)}, v1, 4, 1
              v_lshlrev_b32 {R(t0)}, 4, {R(t0)}
              v_lshrrev_b32 {R(t0)}, {R(t0)}, {S(sTAG)}
              v_lshrrev_b32 {R(t0+1)}, 8, {R(t0)}
              v_and_b32 {R(t0+2)}, 3, v1
              v_lshlrev_b32 {R(t0+2)}, 5, {R(t0+2)}
              v_lshrrev_b32 {R(t0+3)}, 4, v1
              v_lshl_add_u32 {R(t0+2)}, {R(t0+3)}, 3, {R(t0+2)}
              v_and_b32 {R(t0+3)}, 12, v1
              v_lshl_add_u32 {R(t0+2)}, {R(t0+3)}, 26, {R(t0+2)}
              s_movk_i32 {S(sT)}, 0xff""")
        for i in range(10):
            a.wvm(("wm", i))
            for m in range(4):
                for hh, sv in ((0, lo), (1, hi)):
                    c_in = "0" if i == 0 else R(acc + 2*m + hh)
                    a(f"v_dot2_f32_bf16 {R(acc+2*m+hh)}, {R(wraw+4*i+m)}, {R(sv+i)}, {c_in}")
        a("s_nop 2")
        for k in range(4): a(f"v_permlane32_swap_b32 {R(acc+k)}, {R(acc+k+4)}")
        for k in range(4): a(f"v_add_f32 {R(acc+k)}, {R(acc+k)}, {R(acc+k+4)}")
        a("s_nop 1")
        for k in range(2): a(f"v_permlane16_swap_b32 {R(acc+k)}, {R(acc+k+2)}")
        for k in range(2): a(f"v_add_f32 {R(acc+k)}, {R(acc+k)}, {R(acc+k+2)}")
        a("s_nop 1")
        for k in range(2): a(f"v_add_f32_dpp {R(acc+k)}, {R(acc+k)}, {R(acc+k)} row_ror:8 row_mask:0xf bank_mask:0xf")
        a("s_nop 1")
        for k in range(2): a(f"v_add_f32_dpp {R(acc+k)}, {R(acc+k)}, {R(acc+k)} row_ror:4 row_mask:0xf bank_mask:0xf")
        for k in range(2): a(f"v_bfi_b32 {R(acc+k)}, {S(sT)}, {R(t0+k)}, {R(acc+k)}")
        a.vmem(f"buffer_store_dwordx2 {R(acc,2)}, {R(t0+2)}, {S(WS,4)}, {S(sout)} offen sc1", "modst")

    a(f"""s_cmp_ge_u32 s2, 256
          s_cbranch_scc1 L_end
          s_load_dwordx2 {S(C,2)}, s[0:1], 80
          s_load_dwordx2 {S(WM,2)}, s[0:1], 88
          s_load_dwordx2 {S(WS,2)}, s[0:1], 112
          s_load_dwordx2 {S(X,2)}, s[0:1], 0
          s_load_dwordx2 {S(WQ,2)}, s[0:1], 8
          s_load_dwordx4 {S(sPTR,4)}, s[0:1], 16
          v_lshrrev_b32 v2, 6, v0
          v_and_b32 v1, 63, v0
          v_mov_b32 v3, 0
          v_readfirstlane_b32 {S(sW)}, v2""")
    a("v_mov_b32 v8, 0")
    if cfg.stamps: a("v_mov_b32 v0, 0")
    srd(a, WS, W_SIZE); srd(a, C, 1280); srd(a, WM, 640*7680); srd(a, X, 2048*1280)
    a(f"""s_and_b32 {S(sTG)}, {S(sB)}, 31
          s_lshr_b32 {S(sHG)}, {S(sB)}, 5
          s_lshr_b32 {S(sMT)}, {S(sW)}, 1
          s_add_u32 {S(sMT)}, {S(sMT)}, {S(sHG)}
          s_add_u32 {S(sMT)}, {S(sMT)}, 3
          s_and_b32 {S(sMT)}, {S(sMT)}, 3
          s_lshr_b32 {S(sKH)}, {S(sW)}, 2
          s_xor_b32 {S(sKH)}, {S(sKH)}, {S(sW)}
          s_and_b32 {S(sKH)}, {S(sKH)}, 1
          s_waitcnt lgkmcnt(0)""")
    stamp("karg")
    vE = 4
    a.vmem(f"buffer_load_dword {R(vE)}, v3, {S(WS,4)}, 0 offen sc1", "epoch")
    MW, MC, MLO, MHI, MACC, MT0 = 200, 240, 176, 186, 168, 164
    l = if_wave("eq", 0)
    a("s_setprio 3")
    save = list(a.vm)
    mod_issue(0, MW, MC, MT0, sT+8, sT+9)
    vm_w0 = list(a.vm); a.vm = save
    a(f"{l}:")
    a.c("x tile (16 tokens x 320 channels per wave) -> LDS, 16-byte pieces xor-swizzled")
    a(f"""v_lshrrev_b32 v5, 3, v1
          v_lshrrev_b32 v6, 4, v1
          v_and_b32 v7, 7, v1
          v_xor_b32 v7, v7, v6
          v_mul_u32_u24 v5, 1280, v5
          v_lshl_add_u32 v5, v7, 4, v5
          v_xor_b32 v6, 64, v5
          v_add_u32 v6, {8*1280}, v6
          s_lshl_b32 {S(sT)}, {S(sTG)}, 2
          s_add_u32 {S(sT)}, {S(sT)}, {S(sMT)}
          s_mul_i32 {S(sT)}, {S(sT)}, {16*1280}
          s_mul_i32 {S(sT+1)}, {S(sKH)}, 640
          s_add_u32 {S(sT)}, {S(sT)}, {S(sT+1)}
          s_mul_i32 {S(sM0)}, {S(sW)}, 10240""")
    for hf in range(2):
        for q in range(5):
            a(f"s_add_u32 m0, {S(sM0)}, {L_XS + hf*5120 + q*896}\ns_nop 0")
            a.vmem(f"buffer_load_dwordx4 v{5+hf}, {S(X,4)}, {S(sT)} offen offset:{q*128} lds", "x")
            vm_w0.append("x")
    a(f"""s_load_dwordx2 {S(WO,2)}, s[0:1], 32
          s_load_dwordx2 {S(WR,2)}, s[0:1], 48
          s_load_dwordx2 {S(OUT,2)}, s[0:1], 96
          s_load_dwordx4 {S(sPTR+4,4)}, s[0:1], 56
          s_load_dwordx2 {S(sPTR+8,2)}, s[0:1], 72
          s_cmp_lt_u32 {S(sHG)}, 4
          s_cselect_b32 {S(WKV)}, {S(sPTR)}, {S(sPTR+2)}
          s_cselect_b32 {S(WKV+1)}, {S(sPTR+1)}, {S(sPTR+3)}""")
    srd(a, WKV, 25600); srd(a, WQ, 640*1280)
    a(f"s_mov_b32 {S(sSEL0)}, 0x0c0c0400\ns_mov_b32 {S(sSEL1)}, 0x04000c0c")
    vm_common = list(a.vm)
    vWQ = 8
    L_xw = a.label("xready")
    def tag_from_epoch():
        a.wvm("epoch")
        a(f"v_readfirstlane_b32 {S(sTAG)}, {R(vE)}\ns_nop 3\ns_add_u32 {S(sTAG)}, {S(sTAG)}, 0x01010101")
    def wq_dma(n0, n1):
        for n in range(n0, n1):
            blk, g = divmod(n, 5)
            srow = [0, 320, 160, 480][blk] + 32 * g
            ldst = [L_WQ1, L_WQ1 + 25600, L_WQ2, L_WQ2 + 25600][blk] + 5120 * g
            a(f"s_add_u32 m0, {S(sM0)}, {ldst}\ns_add_u32 {S(sT)}, {S(sWOFF)}, {srow*1280}")
            a.vmem(f"buffer_load_dwordx4 {R(vWQ)}, {S(WQ,4)}, {S(sT)} offen lds", ("wq", blk // 2))

    l = if_wave("eq", 0)
    a.vm = vm_w0
    tag_from_epoch()
    mod_compute(MW, MC, MLO, MHI, MACC, MT0, sT+9)
    a("s_setprio 0")
    a.wvm("x")
    a(f"s_branch {L_xw}\n{l}:")
    l = if_wave("ge", 3)
    a.vm = list(vm_common)
    a(f"""s_sub_u32 {S(sM0)}, {S(sW)}, 3
          s_lshl_b32 {S(sT)}, {S(sM0)}, 6
          v_add_u32 v9, {S(sT)}, v1
          s_lshl_b32 {S(sM0)}, {S(sM0)}, 10
          s_mul_i32 {S(sWOFF)}, {S(sHG)}, 160""")
    div10(9, 10, 11)
    a(f"v_mul_u32_u24 v10, 1280, v10\nv_lshl_add_u32 {R(vWQ)}, v11, 4, v10")
    wq_dma(0, 2)
    tag_from_epoch()
    a.wvm("x")
    a(f"s_branch {L_xw}\n{l}:")
    a.vm = list(vm_common)
    a(f"""v_lshlrev_b32 v9, 4, v1
          s_sub_u32 {S(sT)}, {S(sW)}, 1
          s_mul_i32 {S(sT)}, {S(sT)}, {12*1024}""")
    for i in range(13):
        a(f"s_add_u32 m0, {S(sT)}, {L_WKV}\ns_nop 0")
        a.vmem(f"buffer_load_dwordx4 v9, {S(WKV,4)}, {S(sT)} offen lds", "wkv")
        if i < 12: a(f"s_add_u32 {S(sT)}, {S(sT)}, 1024")
    tag_from_epoch()
    a.wvm("x")
    l2 = if_wave("eq", 1)
    a(f"""s_getpc_b64 {S(sT,2)}
          L_pc0:
          s_lshr_b32 {S(sT+2)}, {S(sB)}, 3
          s_and_b32 {S(sT+2)}, {S(sT+2)}, 7
          s_lshl_b32 {S(sT+2)}, {S(sT+2)}, 12
          v_lshlrev_b32 v10, 6, v1
          v_add_u32 v10, {S(sT+2)}, v10
          v_min_u32 v10, L_end-L_pc0, v10
          global_load_dword v11, v10, {S(sT,2)}
          s_branch {L_xw}
          {l2}:""")
    a(f"""v_mov_b32 v12, -1
          v_mov_b32 v13, -1
          v_mov_b32 v14, -1
          v_mov_b32 v15, -1
          s_mul_i32 {S(sT)}, {S(sTG)}, 81920
          s_mul_i32 {S(sT+1)}, {S(sHG)}, 10240
          s_add_u32 {S(sT)}, {S(sT)}, {S(sT+1)}
          s_add_u32 {S(sT)}, {S(sT)}, {W_O}""")
    for i in range(10):
        a(f"buffer_store_dwordx4 v[12:15], v9, {S(WS,4)}, {S(sT)} offen sc1\ns_add_u32 {S(sT)}, {S(sT)}, 1024")
    a(f"""s_lshl_b32 {S(sT)}, {S(sB)}, 10
          s_add_u32 {S(sT+1)}, {S(sT)}, {W_STATS}
          buffer_store_dwordx4 v[12:15], v9, {S(WS,4)}, {S(sT+1)} offen sc1
          s_add_u32 {S(sT+1)}, {S(sT)}, {W_H2ROW}
          buffer_store_dwordx4 v[12:15], v9, {S(WS,4)}, {S(sT+1)} offen sc1
          s_cmp_lt_u32 {S(sB)}, {(W_BASE + 8192 - W_CAND)//1024}
          s_cbranch_scc0 {L_xw}
          s_add_u32 {S(sT+1)}, {S(sT)}, {W_CAND}
          buffer_store_dwordx4 v[12:15], v9, {S(WS,4)}, {S(sT+1)} offen sc1""")
    a(f"{L_xw}:")
    a.vm = []
    stamp("x_landed")

    XR, XN, H = 16, 64, 16
    a.c("x fragments: lane (token = l&15, kg = l>>4)")
    a(f"""v_and_b32 v2, 15, v1
          v_lshrrev_b32 v3, 4, v1
          v_lshrrev_b32 v4, 1, v2
          v_and_b32 v5, 2, v3
          v_xor_b32 v4, v4, v5
          v_lshlrev_b32 v4, 4, v4
          v_and_b32 v5, 1, v3
          v_lshl_add_u32 v4, v5, 3, v4
          v_and_b32 v5, 7, v2
          v_lshl_add_u32 v4, v5, 7, v4
          v_lshrrev_b32 v5, 3, v2
          v_mul_u32_u24 v5, 5120, v5
          s_mul_i32 {S(sT)}, {S(sW)}, 10240
          v_add3_u32 v4, v4, v5, {S(sT)}
          v_xor_b32 v5, 16, v4
          v_xor_b32 v6, 64, v4
          v_xor_b32 v7, 80, v4
          v_mov_b32 v56, 0x3f803f80
          v_mov_b32 v57, 0x3f803f80
          v_mov_b32 v58, 0x3f803f80
          v_mov_b32 v59, 0x3f803f80
          s_waitcnt lgkmcnt(0)""")
    def xread(s):
        for u in range(2):
            a.lds(f"ds_read_b64 {R(XR+4*s+2*u,2)}, v{4+2*(s&1)+u} offset:{L_XS + (s>>1)*1024}", ("xr", s))
    for s in range(6): xread(s)
    l = if_wave("ge", 3)
    wq_dma(2, 10)
    a(f"{l}:")
    a.vm = []
    S1, S2 = 60, 144
    for s in range(10):
        a.wlg(("xr", s))
        if s + 6 < 10: xread(s + 6)
        a(f"v_mfma_f32_16x16x32_bf16 {R(S1,4)}, v[56:59], {R(XR+4*s,4)}, {'0' if s == 0 else R(S1,4)}")
        a(f"v_mfma_f32_16x16x32_bf16 {R(S2,4)}, {R(XR+4*s,4)}, {R(XR+4*s,4)}, {'0' if s == 0 else R(S2,4)}")
        for m in range(4):
            a(f"v_lshlrev_b32 {R(XN+8*s+2*m)}, 16, {R(XR+4*s+m)}\nv_and_b32 {R(XN+8*s+2*m+1)}, 0xffff0000, {R(XR+4*s+m)}")
    a.c("diagonal of X^T X sits in lane kg == token>>2, register token&3")
    a(f"""v_and_b32 v4, 3, v1
          v_cmp_eq_u32 {S(sT,2)}, 1, v4
          v_cmp_eq_u32 {S(sT+2,2)}, 2, v4
          v_cmp_eq_u32 {S(sT+4,2)}, 3, v4
          v_lshrrev_b32 v5, 2, v2
          v_cmp_eq_u32 {S(sT+6,2)}, v5, v3
          v_cndmask_b32 {R(S1+1)}, {R(S2)}, {R(S2+1)}, {S(sT,2)}
          v_cndmask_b32 {R(S1+1)}, {R(S1+1)}, {R(S2+2)}, {S(sT+2,2)}
          v_cndmask_b32 {R(S1+1)}, {R(S1+1)}, {R(S2+3)}, {S(sT+4,2)}
          s_lshr_b32 {S(sT)}, {S(sW)}, 1
          s_lshl_b32 {S(sT)}, {S(sT)}, 8
          v_lshl_add_u32 v4, v2, 4, {S(sT)}
          s_lshl_b32 {S(sT+1)}, {S(sKH)}, 3
          v_add_u32 v5, {S(sT+1)}, v4
          v_add_u32 v4, {L_ST1}, v4
          v_add_u32 v5, {L_ST1}, v5
          s_mov_b64 exec, {S(sT+6,2)}
          ds_write_b64 v5, {R(S1,2)}
          s_mov_b64 exec, -1""")
    a.barrier()
    stamp("B1")
    a.lds(f"ds_read_b128 {R(S2,4)}, v4", "st")
    PH = 148
    a(f"""s_mul_i32 {S(sT)}, {S(sW)}, 640
          v_lshl_add_u32 v9, v1, 4, {S(sT)}
          v_cmp_gt_u32 vcc, 40, v1
          s_mov_b32 {S(sT+4)}, {W_MODP}
          s_mov_b32 {S(sT+5)}, {W_MODP+15360}
          s_mov_b32 {S(sT+6)}, {W_MODP+2*15360}
          s_mov_b32 {S(sT+7)}, {W_MODP+3*15360}
          s_mov_b64 {S(sEX,2)}, vcc
          s_mov_b64 exec, vcc""")
    for k in range(4):
        a(f"buffer_load_dwordx4 {R(PH+4*k,4)}, v9, {S(WS,4)}, {S(sT+4+k)} offen sc1")
    a("s_mov_b64 exec, -1")
    l = if_wave("ge", 3)
    wq_dma(10, 20)
    a(f"{l}:")
    a.vm = []
    a.wlg("st")
    a(f"""v_add_f32 {R(S2)}, {R(S2)}, {R(S2+2)}
          v_add_f32 {R(S2+1)}, {R(S2+1)}, {R(S2+3)}
          v_mul_f32 {R(S2)}, {hex(fbits(1/640))}, {R(S2)}
          v_mul_f32 {R(S2+1)}, {hex(fbits(1/640))}, {R(S2+1)}
          v_fma_f32 {R(S2+1)}, -{R(S2)}, {R(S2)}, {R(S2+1)}
          v_max_f32 {R(S2+1)}, 0, {R(S2+1)}
          v_add_f32 {R(S2+1)}, {hex(fbits(1e-5))}, {R(S2+1)}
          v_rsq_f32 {R(S2+2)}, {R(S2+1)}
          s_nop 0
          v_mul_f32 {R(S2)}, {R(S2)}, {R(S2+2)}""")
    for i in range(40):
        a(f"v_pk_fma_f32 {R(XN+2*i,2)}, {R(XN+2*i,2)}, {R(S2+2,2)}, {R(S2,2)} op_sel_hi:[1,0,0] neg_lo:[0,0,1] neg_hi:[0,0,1]")
    l = if_wave("ge", 3)
    lj = a.label("j")
    a(f"s_waitcnt vmcnt(10)\ns_branch {lj}\n{l}:\ns_waitcnt vmcnt(0)\n{lj}:")
    a(f"s_mov_b64 exec, {S(sEX,2)}")
    tagcheck([PH + 4*k for k in range(4)], 10, 11, 12)
    ok = a.label("h1ok")
    a(f"s_cbranch_vccz {ok}")
    sp = spin_begin()
    for k in range(4):
        a(f"buffer_load_dwordx4 {R(PH+4*k,4)}, v9, {S(WS,4)}, {S(sT+4+k)} offen sc1")
    a("s_waitcnt vmcnt(0)")
    tagcheck([PH + 4*k for k in range(4)], 10, 11, 12)
    spin_end(sp)
    a(f"{ok}:")
    def sum4_round(p, one):
        for j in range(16): a(f"v_and_b32 {R(p+j)}, 0xffffff00, {R(p+j)}")
        for j in range(2):
            a(f"""v_pk_add_f32 {R(p+2*j,2)}, {R(p+2*j,2)}, {R(p+4+2*j,2)}
                  v_pk_add_f32 {R(p+8+2*j,2)}, {R(p+8+2*j,2)}, {R(p+12+2*j,2)}""")
        for j in range(2): a(f"v_pk_add_f32 {R(p+2*j,2)}, {R(p+2*j,2)}, {R(p+8+2*j,2)}")
        for j in range(4): a(f"v_cvt_pk_bf16_f32 {R(p+j)}, 0, {R(p+j)}")
        for j in range(4): a(f"v_add_f32 {R(p+j)}, {S(one)}, {R(p+j)}")
        for j in range(4): a(f"v_cvt_pk_bf16_f32 {R(p+j)}, 0, {R(p+j)}")
    a(f"s_cmp_ge_u32 {S(sW)}, 4\ns_cselect_b32 {S(sT)}, 1.0, 0")
    sum4_round(PH, sT)
    a(f"ds_write_b128 v9, {R(PH,4)} offset:{L_MODF}\ns_mov_b64 exec, -1")
    a.barrier()
    stamp("B2")

    a.c("lane row offset inside a k-step for weight reads: 16*(kg>>1) + 4*(kg&1) + r")
    a(f"""v_lshrrev_b32 v4, 5, v1
          v_bfe_u32 v5, v1, 4, 1
          v_lshlrev_b32 v4, 4, v4
          v_lshl_add_u32 v4, v5, 2, v4
          s_mul_i32 {S(sT)}, {S(sKH)}, 1280
          v_lshl_add_u32 v6, v4, 2, {S(sT)}
          v_bfe_u32 v5, v1, 2, 2
          v_add_u32 v4, v4, v5
          v_and_b32 v5, 3, v1
          v_mul_u32_u24 v7, 40, v4
          v_lshl_add_u32 v7, v5, 3, v7
          s_mul_i32 {S(sT)}, {S(sKH)}, 12800
          s_add_u32 {S(sT)}, {S(sT)}, {L_WKV}
          v_add_u32 v7, {S(sT)}, v7
          v_mul_u32_u24 v10, 160, v4
          v_mul_u32_u24 v5, 40, v5
          s_mul_i32 {S(sT)}, {S(sKH)}, 25600
          v_add3_u32 v10, v10, v5, {S(sT)}
          v_add_u32 v11, {L_WQ1}, v10""")
    l = if_wave("eq", 1)
    a(f"s_cmp_lt_u32 {S(sB)}, 224\ns_cbranch_scc0 {l}")
    mod_issue(128, MW, MC, 12, sT+8, sT+9)
    vm_w1 = list(a.vm); a.vm = []
    a(f"{l}:")
    MB_ = [144, 160, 176]
    def modread(s):
        b = MB_[s % 3]
        for j, off in enumerate((2560, 2592, 0, 32)):
            a.lds(f"ds_read_b128 {R(b+4*j,4)}, v6 offset:{L_MODF + off + 128*s}", ("m", s))
    modread(0); modread(1)
    for s in range(10):
        if s + 2 < 10: modread(s + 2)
        a.wlg(("m", s))
        b = MB_[s % 3]
        for j in range(4):
            a(f"v_pk_fma_f32 {R(XN+8*s+2*j,2)}, {R(XN+8*s+2*j,2)}, {R(b+2*j,2)}, {R(b+8+2*j,2)}")
        for j in range(4):
            a(f"v_cvt_pk_bf16_f32 {R(H+4*s+j)}, {R(XN+8*s+2*j)}, {R(XN+8*s+2*j+1)}")
    KVA = 56
    lkv = a.label("nokv")
    a(f"s_lshr_b32 {S(sT)}, {S(sW)}, 1\ns_cmp_eq_u32 {S(sT)}, 1\ns_cbranch_scc0 {lkv}")
    KW = 64
    for s in range(10):
        for j in range(2):
            for u in range(2):
                a(f"ds_read_b64_tr_b16 {R(KW+8*s+4*j+2*u,2)}, v7 offset:{1280*s + 320*u + 32*j}")
        if s % 3 == 2: a("s_waitcnt lgkmcnt(3)")
    a("s_waitcnt lgkmcnt(0)")
    lv = a.label("isv"); lk = a.label("kvdone")
    a(f"s_cmp_lt_u32 {S(sHG)}, 4\ns_cbranch_scc0 {lv}")
    for s in range(10):
        for j in range(2):
            a(f"v_mfma_f32_16x16x32_bf16 {R(KVA+4*j,4)}, {R(KW+8*s+4*j,4)}, {R(H+4*s,4)}, {'0' if s == 0 else R(KVA+4*j,4)}")
    a(f"s_branch {lk}\n{lv}:")
    for s in range(10):
        for j in range(2):
            a(f"v_mfma_f32_16x16x32_bf16 {R(KVA+4*j,4)}, {R(H+4*s,4)}, {R(KW+8*s+4*j,4)}, {'0' if s == 0 else R(KVA+4*j,4)}")
    a(f"""{lk}:
          v_lshlrev_b32 v12, 4, v1
          s_cmp_eq_u32 {S(sW)}, 3
          s_cbranch_scc0 {lkv}
          s_nop 7
          ds_write_b128 v12, {R(KVA,4)} offset:{L_KVP}
          ds_write_b128 v12, {R(KVA+4,4)} offset:{L_KVP+1024}
          {lkv}:""")
    a.barrier()
    stamp("B3")
    l = if_wave("eq", 2)
    a(f"""ds_read_b128 v[64:67], v12 offset:{L_KVP}
          ds_read_b128 v[68:71], v12 offset:{L_KVP+1024}
          s_lshr_b32 {S(sT)}, {S(sMT)}, 1
          s_lshl_b32 {S(sT+1)}, {S(sTG)}, 1
          s_add_u32 {S(sT+2)}, {S(sT+1)}, {S(sT)}
          s_mul_i32 {S(sT+2)}, {S(sT+2)}, {KVT}
          s_add_u32 {S(sT+2)}, {S(sT+2)}, {W_KV}
          s_and_b32 {S(sT+3)}, {S(sMT)}, 1
          v_lshrrev_b32 v13, 5, v1
          v_bfe_u32 v14, v1, 4, 1
          v_mov_b32 v72, {OOB}""")
    lv = a.label("vst"); lk = a.label("kvst")
    a(f"""s_cmp_lt_u32 {S(sHG)}, 4
          s_cbranch_scc0 {lv}
          s_mov_b32 {S(sT+4)}, {hex(fbits(KSCALE))}
          s_lshl_b32 {S(sT+5)}, {S(sT+3)}, 8
          s_add_u32 {S(sT+2)}, {S(sT+2)}, {S(sT+5)}
          s_mul_i32 {S(sT+1)}, {S(sT+1)}, {KVT}
          s_lshl_b32 {S(sT+5)}, {S(sMT)}, 7
          s_add_u32 {S(sT+1)}, {S(sT+1)}, {S(sT+5)}
          s_add_u32 {S(sT+1)}, {S(sT+1)}, {W_KV+2560}
          v_lshlrev_b32 v13, 9, v13
          v_lshl_add_u32 v13, v2, 4, v13
          v_lshl_add_u32 v13, v14, 3, v13
          v_lshlrev_b32 v14, 3, v2
          v_cmp_gt_u32 vcc, 16, v1
          s_nop 1
          v_cndmask_b32 v14, v72, v14, vcc
          s_mov_b64 {S(sT+6,2)}, 0
          s_branch {lk}
          {lv}:
          s_mov_b32 {S(sT+4)}, 1.0
          s_mul_i32 {S(sT+5)}, {S(sT+3)}, 768
          s_add_u32 {S(sT+2)}, {S(sT+2)}, {S(sT+5)}
          s_add_u32 {S(sT+2)}, {S(sT+2)}, 1024
          s_mov_b32 {S(sT+1)}, {S(sT+2)}
          v_mul_u32_u24 v13, 320, v13
          v_lshl_add_u32 v13, v2, 4, v13
          v_lshl_add_u32 v13, v14, 3, v13
          v_add_u32 v14, 256, v13
          v_cmp_gt_u32 vcc, 4, v2
          v_and_b32 v73, 47, v1
          v_cmp_eq_u32 {S(sT+6,2)}, 36, v73
          s_nop 1
          s_or_b64 vcc, vcc, {S(sT+6,2)}
          s_nop 1
          v_cndmask_b32 v14, v72, v14, vcc
          {lk}:
          s_waitcnt lgkmcnt(0)""")
    for j in range(8): a(f"v_add_f32 {R(KVA+j)}, {R(KVA+j)}, v{64+j}")
    for j in range(8): a(f"v_mul_f32 {R(KVA+j)}, {S(sT+4)}, {R(KVA+j)}")
    for j in range(4): a(f"v_cvt_pk_bf16_f32 v{64+j}, {R(KVA+2*j)}, {R(KVA+2*j+1)}")
    a(f"""v_mov_b32 v73, 0x3f803f80
          v_cndmask_b32 v66, v66, v73, {S(sT+6,2)}
          v_cndmask_b32 v67, v67, v73, {S(sT+6,2)}
          buffer_store_dwordx2 v[64:65], v13, {S(WS,4)}, {S(sT+2)} offen sc1
          buffer_store_dwordx2 v[66:67], v14, {S(WS,4)}, {S(sT+1)} offen sc1
          {l}:""")

    QACC = 56
    WR_ = 80
    NRING = 7
    def gemm_half(s0, s1, areg):
        fr = [(s, j) for s in range(s0, s1) for j in range(5)]
        def rd(i):
            s, j = fr[i]
            for u in range(2):
                a.lds(f"ds_read_b64_tr_b16 {R(WR_+4*(i%NRING)+2*u,2)}, {R(areg)} offset:{5120*(s-s0) + 1280*u + 8*j}", ("w", i))
        for i in range(NRING - 1): rd(i)
        for i, (s, j) in enumerate(fr):
            a.wlg(("w", i))
            a(f"v_mfma_f32_16x16x32_bf16 {R(QACC+4*j,4)}, {R(WR_+4*(i%NRING),4)}, {R(H+4*s,4)}, {'0' if s == 0 else R(QACC+4*j,4)}")
            if i + NRING - 1 < len(fr): rd(i + NRING - 1)
    gemm_half(0, 5, 11)
    l = if_wave("ge", 2)
    a("s_waitcnt vmcnt(0)")
    a(f"""s_cmp_eq_u32 {S(sW)}, 2
          s_cbranch_scc0 {l}
          v_mov_b32 v12, {S(sTAG)}
          s_lshl_b32 {S(sT)}, {S(sB)}, 5
          s_add_u32 {S(sT)}, {S(sT)}, {W_KVF}
          v_lshlrev_b32 v13, 24, v1
          buffer_store_dword v12, v13, {S(WS,4)}, {S(sT)} offen sc1
          {l}:""")
    a.barrier()
    stamp("B3b")
    gemm_half(5, 10, 10)
    a(f"""v_lshlrev_b32 v12, 4, v1
          s_lshr_b32 {S(sT)}, {S(sW)}, 1
          s_mul_i32 {S(sT)}, {S(sT)}, 5120
          s_add_u32 {S(sT)}, {S(sT)}, {L_QP}
          v_add_u32 v12, {S(sT)}, v12""")
    l = a.label("kh0")
    a(f"s_cmp_eq_u32 {S(sKH)}, 1\ns_cbranch_scc0 {l}\ns_nop 3")
    for j in range(5): a(f"ds_write_b128 v12, {R(QACC+4*j,4)} offset:{1024*j}")
    a(f"{l}:")
    a.barrier()
    stamp("B4")
    O_, SB = 64, [192, 224]
    l1 = a.label("kh1"); lj = a.label("qdone")
    a(f"s_cmp_eq_u32 {S(sKH)}, 0\ns_cbranch_scc0 {l1}")
    for j in range(5): a(f"ds_read_b128 {R(80+4*j,4)}, v12 offset:{1024*j}")
    a(f"""s_lshl_b32 {S(sT)}, {S(sMT)}, 4
          v_add_u32 v13, {S(sT)}, v2
          v_mul_u32_u24 v13, {QSTR}, v13
          v_mul_u32_u24 v14, 48, v3
          v_add_u32 v13, v13, v14
          v_add_u32 v13, {L_QS}, v13
          s_waitcnt lgkmcnt(0)""")
    for i in range(10): a(f"v_pk_add_f32 {R(QACC+2*i,2)}, {R(QACC+2*i,2)}, {R(80+2*i,2)}")
    for i in range(10): a(f"v_cvt_pk_bf16_f32 {R(80+i)}, {R(QACC+2*i)}, {R(QACC+2*i+1)}")
    a(f"""ds_write_b128 v13, v[80:83]
          ds_write_b128 v13, v[84:87] offset:16
          ds_write_b64 v13, v[88:89] offset:32
          s_branch {lj}
          {l1}:""")
    l = if_wave("eq", 1)
    a(f"s_cmp_lt_u32 {S(sB)}, 224\ns_cbranch_scc0 {l}")
    a.vm = vm_w1
    mod_compute(MW, MC, MLO, MHI, MACC, MT0, sT+9)
    a.vm = []
    a(f"{l}:")
    l = if_wave("eq", 4)
    a(f"v_lshlrev_b32 v13, 5, v1\ns_mov_b32 {S(sT)}, {W_KVF}\ns_mov_b32 {S(sT+1)}, {W_KVF+4096}")
    sp = spin_begin()
    for k in range(4):
        a(f"buffer_load_dword v{16+k}, v13, {S(WS,4)}, {S(sT+k//2)} offen offset:{2048*(k&1)} sc1")
    a("s_waitcnt vmcnt(0)")
    for k in range(4): a(f"v_xor_b32 v{16+k}, {S(sTAG)}, v{16+k}")
    a("v_or3_b32 v16, v16, v17, v18\nv_or_b32 v16, v16, v19\nv_cmp_ne_u32 vcc, 0, v16")
    spin_end(sp)
    a(f"""s_cmp_eq_u32 {S(sB)}, 0
          s_cbranch_scc0 {l}
          v_mov_b32 v16, {S(sTAG)}
          v_lshlrev_b32 v13, 24, v1
          buffer_store_dword v16, v13, {S(WS,4)}, 0 offen sc1
          {l}:""")
    a(f"{lj}:")

    D = cfg.depth
    QA, QB, IDX, vK16, vK8, vV = 8, 24, 3, 4, 5, 6
    KA = [128 + 4*i for i in range(D)]
    VV = [140 + 8*i for i in range(D)]
    NKB = D // 2 + 1
    KB = [164 + 2*i for i in range(NKB)]
    WOA, vF, FR = 168, 173, 28
    a.c("addresses for K/V fragments, wo slice DMA and FFN weight pieces")
    a(f"""v_lshlrev_b32 {R(vK16)}, 4, v1
          v_lshlrev_b32 {R(vK8)}, 3, v1
          v_and_b32 v174, 31, v1
          v_lshrrev_b32 v175, 5, v1
          v_mul_u32_u24 v176, 20, v175
          v_add_u32 v176, v176, v174
          v_cmp_lt_u32 vcc, 19, v174
          v_subrev_u32 v177, 2, v176
          v_mov_b32 v178, 40
          v_cndmask_b32 v176, v176, v177, vcc
          v_and_b32 v177, 27, v174
          v_cmp_eq_u32 vcc, 18, v177
          v_mov_b32 v179, {OOB >> 4}
          s_mov_b32 {S(sT)}, 0xff880000
          v_cndmask_b32 v176, v176, v178, vcc
          s_mov_b32 {S(sT+1)}, 0xff880000
          s_nop 0
          v_cndmask_b32 v176, v176, v179, {S(sT,2)}
          v_lshlrev_b32 {R(vV)}, 4, v176
          s_and_b32 {S(sT)}, {S(sW)}, 3
          s_mul_i32 {S(sKT)}, {S(sT)}, {16*KVT}
          s_add_u32 {S(sKT)}, {S(sKT)}, {W_KV}""")
    for t in range(1, 16): a(f"s_add_u32 {S(sKT+t)}, {S(sKT)}, {KVT*t}")
    a(f"""s_and_b32 {S(sT)}, {S(sW)}, 1
          s_mul_i32 {S(sT+1)}, {S(sT)}, {13*64}
          s_mul_i32 {S(sM0)}, {S(sT)}, {13*1024}
          s_lshr_b32 {S(sT)}, {S(sW)}, 1
          s_mul_i32 {S(sT+2)}, {S(sT)}, 25600
          s_add_u32 {S(sM0)}, {S(sM0)}, {S(sT+2)}
          s_mul_i32 {S(sWOFF)}, {S(sT)}, {160*1280}
          s_mul_i32 {S(sT+2)}, {S(sHG)}, 160
          s_add_u32 {S(sWOFF)}, {S(sWOFF)}, {S(sT+2)}
          v_add_u32 v174, {S(sT+1)}, v1""")
    for j in range(5):
        div10(174, 176, 177)
        a(f"v_mul_u32_u24 v176, 1280, v176\nv_lshl_add_u32 {R(WOA+j)}, v177, 4, v176")
        if j < 4: a("v_add_u32 v174, 64, v174")
    srd(a, WO, 640*1280); srd(a, OUT, 2048*1280); srd(a, WR, 1280); srd(a, F, 640*3456)
    l1 = a.label("f2"); lj = a.label("fset")
    a(f"""s_and_b32 {S(sT)}, {S(sB)}, 7
          s_lshr_b32 {S(sT+1)}, {S(sB)}, 3
          s_cmp_lt_u32 {S(sB)}, 216
          s_cbranch_scc0 {l1}
          s_mul_i32 {S(sFROLE)}, {S(sT)}, 27
          s_add_u32 {S(sFROLE)}, {S(sFROLE)}, {S(sT+1)}
          s_cmp_lt_u32 {S(sW)}, 4
          s_cselect_b32 {S(F)}, {S(sPTR+4)}, {S(sPTR+6)}
          s_cselect_b32 {S(F+1)}, {S(sPTR+5)}, {S(sPTR+7)}
          s_and_b32 {S(sT)}, {S(sW)}, 3
          s_mul_i32 {S(sF0)}, {S(sT)}, {192*3456}
          s_lshl_b32 {S(sT)}, {S(sFROLE)}, 4
          s_add_u32 {S(sF0)}, {S(sF0)}, {S(sT)}
          s_mov_b32 {S(sFSTEP)}, {64*3456}
          s_and_b32 {S(sT)}, {S(sW)}, 3
          s_cmp_eq_u32 {S(sT)}, 3
          s_cselect_b32 {S(sNF)}, 1, 3
          v_mul_u32_u24 {R(vF)}, 3456, v1
          s_branch {lj}
          {l1}:
          s_mul_i32 {S(sFROLE)}, {S(sT)}, 5
          s_sub_u32 {S(sT+1)}, {S(sT+1)}, 27
          s_add_u32 {S(sFROLE)}, {S(sFROLE)}, {S(sT+1)}
          s_mov_b32 {S(F)}, {S(sPTR+8)}
          s_mov_b32 {S(F+1)}, {S(sPTR+9)}
          s_mul_i32 {S(sF0)}, {S(sW)}, {224*1280}
          s_lshl_b32 {S(sT)}, {S(sFROLE)}, 5
          s_add_u32 {S(sF0)}, {S(sF0)}, {S(sT)}
          s_mov_b32 {S(sFSTEP)}, {32*1280}
          s_cmp_eq_u32 {S(sW)}, 7
          s_cselect_b32 {S(sNF)}, 5, 7
          v_lshrrev_b32 v174, 1, v1
          v_mul_u32_u24 v174, 1280, v174
          v_and_b32 v175, 1, v1
          v_lshl_add_u32 {R(vF)}, v175, 4, v174
          {lj}:""")
    a.c("Q fragment addresses; local tile i is q-tile 4*(w>>2) + ((w+i)&3)")
    a(f"""v_and_b32 v174, 7, v1
          v_mul_u32_u24 v174, {QSTR}, v174
          v_bfe_u32 v175, v1, 3, 2
          v_mul_u32_u24 v175, 48, v175
          v_add_u32 v174, v174, v175
          v_lshrrev_b32 v175, 5, v1
          v_lshl_add_u32 v176, v175, 4, v174
          s_and_b32 {S(sT)}, {S(sW)}, 4""")
    for i in range(4):
        a(f"""s_add_u32 {S(sT+1)}, {S(sW)}, {i}
              s_and_b32 {S(sT+1)}, {S(sT+1)}, 3
              s_or_b32 {S(sT+1)}, {S(sT+1)}, {S(sT)}
              s_mul_i32 {S(sT+2+i)}, {S(sT+1)}, {8*QSTR}
              s_add_u32 {S(sT+2+i)}, {S(sT+2+i)}, {L_QS}
              v_add_u32 v{178+i}, {S(sT+2+i)}, v176""")
    a(f"""v_cmp_lt_u32 vcc, 31, v1
          v_mov_b32 {R(IDX)}, 0xdddddddd
          s_nop 0
          v_cndmask_b32 v182, v178, v179, vcc
          v_cndmask_b32 v183, v180, v181, vcc
          v_lshlrev_b32 v175, 4, v175
          v_sub_u32 v182, v182, v175
          v_sub_u32 v183, v183, v175""")
    a.lg0()
    for i in range(64): a(f"v_mov_b32 {R(O_+i)}, 0")
    for i in range(8): a(f"v_mov_b32 {R(FR+20+i)}, 0")
    a.barrier()
    stamp("B5")
    sld = "sc1"
    def ldk(t): a.vmem(f"buffer_load_dwordx4 {R(KA[t%D],4)}, {R(vK16)}, {S(WS,4)}, {S(sKT+t)} offen {sld}", ("k", t))
    def ldb(p): a.vmem(f"buffer_load_dwordx2 {R(KB[p%NKB],2)}, {R(vK8)}, {S(WS,4)}, {S(sKT+2*p)} offen offset:2560 {sld}", ("b", p))
    def ldv(t):
        for i in range(2): a.vmem(f"buffer_load_dwordx4 {R(VV[t%D]+4*i,4)}, {R(vV)}, {S(WS,4)}, {S(sKT+t)} offen offset:{1024+768*i} {sld}", ("v", t))
    a.vm = []
    ldb(0); ldk(0); ldv(0)
    for t in range(1, D): ldk(t); ldv(t)
    for p in range(1, NKB): ldb(p)
    for i in range(4): a.lds(f"ds_read_b128 {R(QA+4*i,4)}, v{178+i}")
    for p in range(2): a.lds(f"ds_read_b64 {R(QB+2*p,2)}, v{182+p} offset:32")
    a.barrier()
    if cfg.prio: a("s_setprio 3")
    a.wvm([("b", 0), ("k", 0)])
    a(f"""v_mfma_f32_32x32x4_2b_bf16 {R(SB[0],32)}, {R(KB[0],2)}, {R(QB,2)}, 0 cbsz:1 abid:0
          s_nop 15
          s_nop 1
          v_mfma_f32_32x32x16_bf16 {R(SB[0],16)}, {R(KA[0],4)}, {R(QA,4)}, {R(SB[0],16)}
          v_mfma_f32_32x32x16_bf16 {R(SB[0]+16,16)}, {R(KA[0],4)}, {R(QA+4,4)}, {R(SB[0]+16,16)}
          s_nop 10""")
    stamp("attn0")

    units = [(t, p) for t in range(16) for p in range(2)]
    NU = len(units)
    wo_at = {2*i + 1: i for i in range(13)}
    def f_slot(u):
        k, r = divmod(u, 4)
        if k >= 7: return
        lab = a.label("nof")
        a(f"s_and_b32 {S(sT)}, {S(sW)}, 3\ns_cmp_eq_u32 {S(sT)}, {r}\ns_cbranch_scc0 {lab}")
        if k >= 1: a(f"s_cmp_gt_u32 {S(sNF)}, {k}\ns_cbranch_scc0 {lab}")
        a(f"buffer_load_dwordx4 {R(FR+4*k,4)}, {R(vF)}, {S(F,4)}, {S(sF0)} offen\ns_add_u32 {S(sF0)}, {S(sF0)}, {S(sFSTEP)}\n{lab}:")
    for u, (t, p) in enumerate(units):
        cur = SB[u & 1]; nxt = SB[(u + 1) & 1]
        last = u == NU - 1
        tn, pn = units[min(u + 1, NU - 1)]
        tp, pp = units[u - 1]
        def e(x, y):
            for i in range(x, y): a(f"v_exp_f32 {R(cur+i)}, {R(cur+i)}")
        def sm(o, av, bv): a(f"v_smfmac_f32_32x32x32_bf16 {R(o,16)}, {R(av,4)}, {R(bv,8)}, {R(IDX)}")
        if cfg.prio and p == 0 and t in cfg.prio: a(f"s_setprio {2 - cfg.prio.index(t)}")
        e(0, 2)
        if u > 0: sm(O_ + 32*pp + 16, VV[tp % D] + 4, nxt + 24)
        if p == 0 and t > 0 and t + D - 1 < 16: ldv(t + D - 1)
        if p == 1 and not last: a.wvm([("k", tn), ("b", tn >> 1)])
        e(2, 5)
        if not last: a(f"v_mfma_f32_32x32x4_2b_bf16 {R(nxt,32)}, {R(KB[(tn>>1)%NKB],2)}, {R(QB+2*pn,2)}, 0 cbsz:1 abid:{tn&1}")
        if p == 1 and t + D < 16: ldk(t + D)
        if p == 1 and (t & 1) and (t >> 1) + NKB < 8: ldb((t >> 1) + NKB)
        e(5, 13)
        if p == 0: a.wvm(("v", t))
        sm(O_ + 32*p, VV[t % D], cur)
        e(13, 18)
        sm(O_ + 32*p, VV[t % D] + 4, cur + 8)
        if u in wo_at:
            i = wo_at[u]
            a(f"s_mov_b32 m0, {S(sM0)}\ns_add_u32 {S(sM0)}, {S(sM0)}, 1024")
            a.vmem(f"buffer_load_dwordx4 {R(WOA+i%5)}, {S(WO,4)}, {S(sWOFF)} offen lds", "wo")
            if i % 5 == 4: a(f"s_add_u32 {S(sWOFF)}, {S(sWOFF)}, {32*1280}")
        e(18, 21)
        if not last: a(f"v_mfma_f32_32x32x16_bf16 {R(nxt,16)}, {R(KA[tn%D],4)}, {R(QA+8*pn,4)}, {R(nxt,16)}")
        e(21, 25)
        if not last: a(f"v_mfma_f32_32x32x16_bf16 {R(nxt+16,16)}, {R(KA[tn%D],4)}, {R(QA+8*pn+4,4)}, {R(nxt+16,16)}")
        f_slot(u)
        e(25, 28)
        sm(O_ + 32*p + 16, VV[t % D], cur + 16)
        e(28, 32)
    a(f"s_nop 1\nv_smfmac_f32_32x32x32_bf16 {R(O_+48,16)}, {R(VV[15%D]+4,4)}, {R(SB[1]+24,8)}, {R(IDX)}")
    stamp("attn1")

    a(f"s_and_b32 {S(sT)}, {S(sW)}, 4")
    for i in (1, 2, 3):
        o = O_ + 16*i; p = 128 + 8*i
        a(f"""s_add_u32 {S(sT+1)}, {S(sW)}, {i}
              s_and_b32 {S(sT+1)}, {S(sT+1)}, 3
              s_or_b32 {S(sT+1)}, {S(sT+1)}, {S(sT)}
              s_mul_i32 {S(sT+1)}, {S(sT+1)}, 4608
              s_add_u32 {S(sT+1)}, {S(sT+1)}, {L_PART + 1536*(i-1)}
              v_add_u32 v174, {S(sT+1)}, {R(vK16)}
              v_add_u32 v175, {S(sT+1)}, {R(vK8)}""")
        for j in range(5): a(f"v_cvt_pk_bf16_f32 {R(p+j)}, {R(o+2*j)}, {R(o+2*j+1)}")
        a(f"v_mov_b32 {R(p+5)}, {R(o+10)}\nds_write_b128 v174, {R(p,4)}\nds_write_b64 v175, {R(p+4,2)} offset:1024")
    a(f"""s_mul_i32 {S(sT+1)}, {S(sW)}, 4608
          s_add_u32 {S(sT+1)}, {S(sT+1)}, {L_PART}
          v_add_u32 v174, {S(sT+1)}, {R(vK16)}
          v_add_u32 v175, {S(sT+1)}, {R(vK8)}
          s_setprio 0""")
    a.vm0()
    a.barrier()
    stamp("B6")
    for i in range(3):
        a.lds(f"ds_read_b128 {R(128+8*i,4)}, v174 offset:{1536*i}", ("p", i))
        a.lds(f"ds_read_b64 {R(132+8*i,2)}, v175 offset:{1536*i+1024}", ("p", i))
    a(f"""s_movk_i32 {S(sT)}, 0x3f80
          s_mov_b32 {S(sT+1)}, 0x3f800000
          v_bfe_u32 v176, v1, 3, 2
          v_lshrrev_b32 v177, 5, v1
          v_and_b32 v178, 7, v1
          v_lshlrev_b32 v178, 4, v178
          v_lshl_add_u32 v178, v177, 10, v178
          v_lshl_add_u32 v179, v176, 2, v178
          v_add_u32 v179, 8192, v179
          v_lshl_add_u32 v178, v176, 11, v178
          s_mul_i32 {S(sT+2)}, {S(sTG)}, 81920
          s_mul_i32 {S(sT+3)}, {S(sHG)}, 10240
          s_lshl_b32 {S(sT+4)}, {S(sW)}, 7
          s_add_u32 {S(sT+2)}, {S(sT+2)}, {W_O}
          s_add_u32 {S(sT+3)}, {S(sT+3)}, {S(sT+4)}
          s_add_u32 {S(sT+3)}, {S(sT+3)}, {S(sT+2)}""")
    for i in range(3):
        a.wlg(("p", i))
        for j in range(5):
            a(f"v_dot2c_f32_bf16 {R(O_+2*j)}, {S(sT)}, {R(128+8*i+j)}\nv_dot2c_f32_bf16 {R(O_+2*j+1)}, {S(sT+1)}, {R(128+8*i+j)}")
        a(f"v_add_f32 {R(O_+10)}, {R(O_+10)}, {R(133+8*i)}")
    a.c("range check on the softmax denominator; outside it this wave redoes its tile with the true row maximum")
    lo_lim, hi_lim = (2.0**60, 2.0**-60) if cfg.force_slow else (2.0**-40, 2.0**60)
    a(f"""v_cmp_nle_f32 vcc, {hex(fbits(lo_lim))}, {R(O_+10)}
          s_mov_b64 {S(sT+4,2)}, vcc
          v_cmp_nge_f32 vcc, {hex(fbits(hi_lim))}, {R(O_+10)}
          s_or_b64 vcc, vcc, {S(sT+4,2)}
          s_cbranch_vccnz L_slow
          L_slow_done:
          v_rcp_f32 {R(O_+10)}, {R(O_+10)}
          s_nop 0""")
    for j in range(5): a(f"v_pk_mul_f32 {R(O_+2*j,2)}, {R(O_+2*j,2)}, {R(O_+10,2)} op_sel_hi:[1,0]")
    for j in range(5): a(f"v_cvt_pk_bf16_f32 {R(128+j)}, {R(O_+2*j)}, {R(O_+2*j+1)}")
    a(f"""buffer_store_dwordx4 v[128:131], v178, {S(WS,4)}, {S(sT+3)} offen sc1
          buffer_store_dword v132, v179, {S(WS,4)}, {S(sT+3)} offen sc1""")
    stamp("o_stored")

    OF, ACC, WF, XRES = 64, 104, 128, 8
    NWF = 30
    a.c("wave (mt = w&3, kh = w>>2); lane (token = l&15, g = l>>4)")
    a(f"""s_and_b32 {S(sMT)}, {S(sW)}, 3
          s_lshr_b32 {S(sKH)}, {S(sW)}, 2
          v_lshrrev_b32 v3, 4, v1
          v_lshlrev_b32 v4, 4, v2
          v_lshl_add_u32 v4, v3, 10, v4
          s_mul_i32 {S(sT+3)}, {S(sKH)}, 40960
          s_lshl_b32 {S(sT+4)}, {S(sMT)}, 8
          s_add_u32 {S(sT+2)}, {S(sT+2)}, {S(sT+3)}
          s_add_u32 {S(sKT)}, {S(sT+2)}, {S(sT+4)}""")
    for s in range(1, 10): a(f"s_add_u32 {S(sKT+s)}, {S(sKT)}, {4096*s}")
    a(f"""s_lshl_b32 {S(sT)}, {S(sTG)}, 2
          s_add_u32 {S(sT)}, {S(sT)}, {S(sMT)}
          s_mul_i32 {S(sKT+10)}, {S(sT)}, {16*1280}
          s_mul_i32 {S(sT+1)}, {S(sHG)}, 160
          s_add_u32 {S(sKT+10)}, {S(sKT+10)}, {S(sT+1)}
          v_mul_u32_u24 v5, 1280, v2
          v_mul_u32_u24 v6, 40, v3
          v_add_u32 v5, v5, v6""")
    lh = a.label("helper"); lj = a.label("pre")
    a(f"s_cmp_eq_u32 {S(sKH)}, 0\ns_cbranch_scc0 {lh}")
    a(f"""buffer_load_dwordx4 {R(XRES,4)}, v5, {S(X,4)}, {S(sKT+10)} offen
          buffer_load_dwordx4 {R(XRES+4,4)}, v5, {S(X,4)}, {S(sKT+10)} offen offset:16
          buffer_load_dwordx2 {R(XRES+8,2)}, v5, {S(X,4)}, {S(sKT+10)} offen offset:32
          s_branch {lj}
          {lh}:""")
    a.c("waves 4..7: gather ga / sb / cb / gb for this column slice")
    PM = 8
    a(f"""s_mul_i32 {S(sT)}, {S(sMT)}, 2560
          s_mul_i32 {S(sT+1)}, {S(sHG)}, 320
          s_add_u32 {S(sT)}, {S(sT)}, {S(sT+1)}
          s_add_u32 {S(sT+4)}, {S(sT)}, {W_MODP + 5120}
          s_add_u32 {S(sT+5)}, {S(sT+4)}, 15360
          s_add_u32 {S(sT+6)}, {S(sT+5)}, 15360
          s_add_u32 {S(sT+7)}, {S(sT+6)}, 15360
          s_mul_i32 {S(sT+1)}, {S(sHG)}, 160
          v_lshlrev_b32 v6, 4, v1
          v_lshlrev_b32 v7, 3, v1
          v_mov_b32 v56, 0
          s_mov_b64 exec, 0xfffff
          buffer_load_dwordx2 v[24:25], v7, {S(WR,4)}, {S(sT+1)} offen""")
    sp = spin_begin()
    for k in range(4): a(f"buffer_load_dwordx4 {R(PM+4*k,4)}, v6, {S(WS,4)}, {S(sT+4+k)} offen sc1")
    a("s_waitcnt vmcnt(0)")
    tagcheck([PM + 4*k for k in range(4)], 26, 27, 57)
    spin_end(sp)
    a(f"s_cmp_eq_u32 {S(sMT)}, 2\ns_cselect_b32 {S(sT)}, 1.0, 0")
    sum4_round(PM, sT)
    a(f"""s_mul_i32 {S(sT)}, {S(sMT)}, 320
          s_add_u32 {S(sT)}, {S(sT)}, {L_MB}
          v_add_u32 v7, {S(sT)}, v6
          ds_write_b128 v7, {R(PM,4)}
          v_lshlrev_b32 v58, 16, v24
          v_and_b32 v59, 0xffff0000, v24
          v_lshlrev_b32 v60, 16, v25
          v_and_b32 v61, 0xffff0000, v25
          v_pk_mul_f32 v[12:13], v[8:9], v[58:59]
          v_pk_mul_f32 v[14:15], v[10:11], v[60:61]
          v_add_u32 v6, {L_MB + 1280}, v6
          v_add_f32 v56, v12, v13
          v_add_f32 v57, v14, v15
          v_add_f32 v56, v56, v57""")
    l = a.label("nota")
    a(f"""s_cmp_eq_u32 {S(sMT)}, 2
          s_cbranch_scc0 {l}
          ds_write_b128 v6, v[12:15]
          {l}:
          s_mov_b64 exec, -1
          s_nop 1""")
    for rot in (8, 4, 2, 1):
        a(f"v_add_f32_dpp v56, v56, v56 row_ror:{rot} row_mask:0xf bank_mask:0xf\ns_nop 1")
    a(f"""v_readlane_b32 {S(sT)}, v56, 16
          s_lshl_b32 {S(sT+1)}, {S(sMT)}, 2
          s_add_u32 {S(sT+1)}, {S(sT+1)}, {L_MB + 1600}
          v_mov_b32 v57, {S(sT+1)}
          v_add_f32 v56, {S(sT)}, v56
          s_mov_b64 exec, 1
          ds_write_b32 v57, v56
          s_mov_b64 exec, -1
          {lj}:""")
    a.c("FFN gate/up pieces -> LDS image")
    l = a.label("nof1")
    a(f"""s_cmp_lt_u32 {S(sB)}, 216
          s_cbranch_scc0 {l}
          s_mul_i32 {S(sT)}, {S(sKH)}, {L_FU - L_FG}
          s_mul_i32 {S(sT+1)}, {S(sMT)}, 3072
          s_add_u32 {S(sT)}, {S(sT)}, {S(sT+1)}
          s_add_u32 {S(sT)}, {S(sT)}, {L_FG}
          v_lshl_add_u32 v6, v1, 4, {S(sT)}
          ds_write_b128 v6, {R(FR,4)}
          s_cmp_eq_u32 {S(sMT)}, 3
          s_cbranch_scc1 {l}
          ds_write_b128 v6, {R(FR+4,4)} offset:1024
          ds_write_b128 v6, {R(FR+8,4)} offset:2048
          {l}:""")
    def oload(s): a(f"buffer_load_dwordx4 {R(OF+4*s,4)}, v4, {S(WS,4)}, {S(sKT+s)} offen sc1")
    for s in range(10): oload(s)
    a.c("wo row addresses follow the channel order of the o chunks")
    AB, A2a, A2b, A4a, A4b = 248, 249, 250, 251, 252
    a(f"""v_bfe_u32 v56, v1, 2, 2
          v_bfe_u32 v57, v1, 4, 1
          v_lshrrev_b32 v58, 5, v1
          v_mul_u32_u24 v58, 20, v58
          v_lshl_add_u32 v58, v57, 2, v58
          v_add_u32 v58, v58, v56
          v_lshrrev_b32 v59, 1, v56
          v_mul_u32_u24 v59, 20, v59
          v_and_b32 v56, 1, v56
          v_lshl_add_u32 v59, v57, 1, v59
          v_add3_u32 v59, v59, v56, 16
          v_and_b32 v56, 3, v1
          v_mul_u32_u24 v56, 40, v56
          s_mul_i32 {S(sT)}, {S(sKH)}, 51200
          v_mul_u32_u24 v58, 160, v58
          v_mul_u32_u24 v59, 160, v59
          v_add3_u32 {R(AB)}, v58, v56, {S(sT)}
          v_add3_u32 v59, v59, v56, {S(sT)}
          v_cmp_lt_u32 vcc, 31, v1
          v_add_u32 v56, {60*160}, {R(AB)}
          v_add_u32 v57, {68*160}, {R(AB)}
          v_add_u32 v58, {40*160}, v59
          v_cndmask_b32 {R(A2a)}, v59, v56, vcc
          v_cndmask_b32 {R(A2b)}, v58, v57, vcc
          v_add_u32 v56, {140*160}, {R(AB)}
          v_add_u32 v57, {148*160}, {R(AB)}
          v_add_u32 v58, {80*160}, v59
          v_add_u32 v59, {120*160}, v59
          v_cndmask_b32 {R(A4a)}, v56, v58, vcc
          v_cndmask_b32 {R(A4b)}, v57, v59, vcc""")
    a.barrier()
    stamp("B7")
    def wread(i):
        s, j = divmod(i, 5)
        per, s5 = divmod(s, 5)
        base = L_WO + 25600*per + 8*j
        for u in range(2):
            if s5 in (0, 1, 3): areg, off = AB, {0: 0, 1: 40, 3: 100}[s5]*160 + 1280*u
            else: areg, off = ((A2a, A2b) if s5 == 2 else (A4a, A4b))[u], 0
            a.lds(f"ds_read_b64_tr_b16 {R(WF+4*(i%NWF)+2*u,2)}, {R(areg)} offset:{base+off}", ("wf", i))
            if len(a.lg) >= 14: a.wlg(a.lg[1])
    for i in range(NWF): wread(i)
    retry = []
    for s in range(10):
        a(f"s_waitcnt vmcnt({9-s})")
        poisoncheck(range(OF+4*s, OF+4*s+4), 56)
        lr, lb = a.label("oretry"), a.label("oback")
        a(f"s_cbranch_vccnz {lr}\n{lb}:")
        retry.append((s, lr, lb))
        for j in range(5):
            i = 5*s + j
            a.wlg(("wf", i))
            a(f"v_mfma_f32_16x16x32_bf16 {R(ACC+4*j,4)}, {R(WF+4*(i%NWF),4)}, {R(OF+4*s,4)}, {'0' if s == 0 else R(ACC+4*j,4)}")
        for j in range(5):
            if 5*s + j + NWF < 50: wread(5*s + j + NWF)
    stamp("gemm2")
    a(f"""s_mul_i32 {S(sT)}, {S(sMT)}, 5120
          s_add_u32 {S(sT)}, {S(sT)}, {L_PART}
          v_lshl_add_u32 v6, v1, 4, {S(sT)}
          v_mul_u32_u24 v7, 80, v3
          v_add_u32 v7, {L_MB}, v7""")
    lh = a.label("helper2")
    a(f"s_cmp_eq_u32 {S(sKH)}, 0\ns_cbranch_scc0 {lh}")

    GA, AV, PP, X1 = 128, 148, 168, 64
    for j in range(5): a(f"ds_read_b128 {R(GA+4*j,4)}, v7 offset:{16*j}")
    for j in range(5): a(f"ds_read_b128 {R(AV+4*j,4)}, v7 offset:{1280+16*j}")
    a(f"v_mov_b32 v57, {L_MB+1600}\nds_read_b128 v[60:63], v57")
    for m in range(10):
        a(f"v_lshlrev_b32 {R(X1+2*m)}, 16, {R(XRES+m)}\nv_and_b32 {R(X1+2*m+1)}, 0xffff0000, {R(XRES+m)}")
    a.barrier()
    for j in range(5): a(f"ds_read_b128 {R(PP+4*j,4)}, v6 offset:{1024*j}")
    a(f"""s_lshl_b32 {S(sT)}, {S(sTG)}, 13
          s_lshl_b32 {S(sT+1)}, {S(sMT)}, 8
          s_add_u32 {S(sT)}, {S(sT)}, {S(sT+1)}
          s_add_u32 {S(sT)}, {S(sT)}, {W_STATS}
          s_lshl_b32 {S(sT+1)}, {S(sHG)}, 10
          s_add_u32 {S(sT+1)}, {S(sT+1)}, {S(sT)}
          s_add_u32 {S(sT+2)}, {S(sT)}, 4096
          v_and_b32 v56, 1, v1
          v_cmp_eq_u32 vcc, 1, v56
          s_waitcnt lgkmcnt(0)
          v_cndmask_b32 v59, v62, v61, vcc""")
    for m in range(10): a(f"v_pk_add_f32 {R(ACC+2*m,2)}, {R(ACC+2*m,2)}, {R(PP+2*m,2)}")
    for m in range(10): a(f"v_pk_fma_f32 {R(X1+2*m,2)}, {R(ACC+2*m,2)}, {R(GA+2*m,2)}, {R(X1+2*m,2)}")
    a(f"""v_pk_add_f32 v[84:85], {R(X1,2)}, {R(X1+2,2)}
          v_pk_mul_f32 v[86:87], {R(X1,2)}, {R(X1,2)}
          v_pk_mul_f32 v[88:89], {R(X1,2)}, {R(AV,2)}""")
    for m in range(1, 10):
        if m > 1: a(f"v_pk_add_f32 v[84:85], v[84:85], {R(X1+2*m,2)}")
        a(f"v_pk_fma_f32 v[86:87], {R(X1+2*m,2)}, {R(X1+2*m,2)}, v[86:87]\nv_pk_fma_f32 v[88:89], {R(X1+2*m,2)}, {R(AV+2*m,2)}, v[88:89]")
    a("v_add_f32 v56, v84, v85\nv_add_f32 v57, v86, v87\nv_add_f32 v58, v88, v89")
    def allreduce_g(regs, tmp):
        for sw in ("32", "16"):
            for k, r in enumerate(regs): a(f"v_mov_b32 {R(tmp+k)}, {R(r)}")
            a("s_nop 1")
            for k, r in enumerate(regs): a(f"v_permlane{sw}_swap_b32 {R(r)}, {R(tmp+k)}")
            for k, r in enumerate(regs): a(f"v_add_f32 {R(r)}, {R(r)}, {R(tmp+k)}")
    allreduce_g([56, 57, 58], 84)
    a(f"""s_mov_b64 exec, 0xffff
          buffer_store_dwordx4 v[56:59], v4, {S(WS,4)}, {S(sT+1)} offen sc1
          s_mov_b64 exec, -1""")
    stamp("stats_pub")
    G2, SBV, GB = 128, 148, 168
    for j in range(5): a(f"ds_read_b128 {R(G2+4*j,4)}, v7 offset:{640+16*j}")
    for j in range(5): a(f"ds_read_b128 {R(SBV+4*j,4)}, v7 offset:{320+16*j}")
    for j in range(5): a(f"ds_read_b128 {R(GB+4*j,4)}, v7 offset:{960+16*j}")
    sp = spin_begin()
    a(f"""buffer_load_dwordx4 v[84:87], v4, {S(WS,4)}, {S(sT)} offen sc1
          buffer_load_dwordx4 v[88:91], v4, {S(WS,4)}, {S(sT+2)} offen sc1
          s_waitcnt vmcnt(0)""")
    poisoncheck(range(84, 92), 56)
    spin_end(sp)
    stamp("H4")
    a("v_pk_add_f32 v[56:57], v[84:85], v[88:89]\nv_pk_add_f32 v[58:59], v[86:87], v[90:91]")
    allreduce_g([56, 57, 58, 59], 84)
    a(f"""v_mul_f32 v56, {hex(fbits(1/640))}, v56
          v_mul_f32 v57, {hex(fbits(1/640))}, v57
          v_mov_b32_dpp v60, v59 quad_perm:[0,0,2,2] row_mask:0xf bank_mask:0xf
          v_mov_b32_dpp v61, v59 quad_perm:[1,1,3,3] row_mask:0xf bank_mask:0xf
          v_fma_f32 v57, -v56, v56, v57
          v_max_f32 v57, 0, v57
          v_add_f32 v57, {hex(fbits(1e-5))}, v57
          v_rsq_f32 v62, v57
          v_fma_f32 v58, -v56, v60, v58
          s_lshl_b32 {S(sT)}, {S(sTG)}, 2
          s_add_u32 {S(sT)}, {S(sT)}, {S(sMT)}
          s_lshl_b32 {S(sT+1)}, {S(sT)}, 4
          s_sub_u32 {S(sT+1)}, 2047, {S(sT+1)}
          v_fma_f32 v58, v58, v62, v61
          v_mul_f32 v56, v56, v62
          v_ashrrev_i32 v59, 31, v58
          v_or_b32 v59, 0x80000000, v59
          v_xor_b32 v58, v58, v59
          v_and_b32 v58, 0xfffff800, v58
          v_sub_u32 v59, {S(sT+1)}, v2
          v_or_b32 v58, v58, v59
          v_min_u32 v58, -2, v58
          s_nop 1
          v_max_u32_dpp v59, v58, v58 row_ror:8 row_mask:0xf bank_mask:0xf
          s_nop 1
          v_max_u32_dpp v59, v59, v59 row_ror:4 row_mask:0xf bank_mask:0xf
          s_nop 1
          v_max_u32_dpp v59, v59, v59 row_ror:2 row_mask:0xf bank_mask:0xf
          s_nop 1
          v_max_u32_dpp v59, v59, v59 row_ror:1 row_mask:0xf bank_mask:0xf""")
    l = a.label("nocand")
    a(f"""s_cmp_eq_u32 {S(sHG)}, 0
          s_cbranch_scc0 {l}
          s_lshl_b32 {S(sT+2)}, {S(sT)}, 5
          s_add_u32 {S(sT+2)}, {S(sT+2)}, {W_CAND}
          v_lshlrev_b32 v60, 24, v1
          buffer_store_dword v59, v60, {S(WS,4)}, {S(sT+2)} offen sc1
          {l}:
          v_cmp_eq_u32 {S(sEX,2)}, v58, v59
          s_waitcnt lgkmcnt(0)""")
    H2, PK = 84, 104
    for m in range(10): a(f"v_pk_fma_f32 {R(H2+2*m,2)}, {R(X1+2*m,2)}, v[62:63], v[56:57] op_sel_hi:[1,0,0] neg_lo:[0,0,1] neg_hi:[0,0,1]")
    for m in range(10): a(f"v_pk_fma_f32 {R(H2+2*m,2)}, {R(H2+2*m,2)}, {R(G2+2*m,2)}, {R(SBV+2*m,2)}")
    for m in range(10): a(f"v_cvt_pk_bf16_f32 {R(PK+m)}, {R(H2+2*m)}, {R(H2+2*m+1)}")
    a(f"""s_lshl_b32 {S(sT+2)}, {S(sT)}, 11
          s_lshl_b32 {S(sT+3)}, {S(sHG)}, 8
          s_add_u32 {S(sT+2)}, {S(sT+2)}, {S(sT+3)}
          s_add_u32 {S(sT+2)}, {S(sT+2)}, {W_H2ROW}
          v_mul_u32_u24 v60, 40, v3
          s_mov_b64 exec, {S(sEX,2)}
          buffer_store_dwordx4 {R(PK,4)}, v60, {S(WS,4)}, {S(sT+2)} offen sc1
          buffer_store_dwordx4 {R(PK+4,4)}, v60, {S(WS,4)}, {S(sT+2)} offen offset:16 sc1
          buffer_store_dwordx2 {R(PK+8,2)}, v60, {S(WS,4)}, {S(sT+2)} offen offset:32 sc1
          s_mov_b64 exec, -1""")
    stamp("cand_pub")
    PK2 = 116
    for m in range(10): a(f"v_pk_fma_f32 {R(X1+2*m,2)}, {R(H2+2*m,2)}, {R(GB+2*m,2)}, {R(X1+2*m,2)}")
    for m in range(10): a(f"v_cvt_pk_bf16_f32 {R(PK2+m)}, {R(X1+2*m)}, {R(X1+2*m+1)}")
    def outstore():
        a(f"""buffer_store_dwordx4 {R(PK2,4)}, v5, {S(OUT,4)}, {S(sKT+10)} offen
              buffer_store_dwordx4 {R(PK2+4,4)}, v5, {S(OUT,4)}, {S(sKT+10)} offen offset:16
              buffer_store_dwordx2 {R(PK2+8,2)}, v5, {S(OUT,4)}, {S(sKT+10)} offen offset:32""")
    a(f"s_andn2_b64 exec, exec, {S(sEX,2)}")
    outstore()
    a(f"s_mov_b64 exec, -1\nv_mov_b32 v57, {L_WIN}\ns_barrier\nds_read_b32 v56, v57\ns_waitcnt lgkmcnt(0)")
    lw = a.label("winner"); lt = a.label("tail")
    a(f"""v_readfirstlane_b32 {S(sKEY)}, v56
          v_cmp_eq_u32 vcc, v56, v59
          s_mov_b64 exec, {S(sEX,2)}
          s_cbranch_vccnz {lw}""")
    outstore()
    a(f"""s_mov_b64 exec, -1
          s_branch {lt}
          {lw}:
          v_mul_u32_u24 v60, 80, v3
          s_lshl_b32 {S(sT+2)}, {S(sHG)}, 10
          s_add_u32 {S(sT+2)}, {S(sT+2)}, {W_BASE}""")
    for j in range(5):
        a(f"buffer_store_dwordx4 {R(X1+4*j,4)}, v60, {S(WS,4)}, {S(sT+2)} offen offset:{16*j} sc1")
        a(f"buffer_store_dwordx4 {R(GB+4*j,4)}, v60, {S(WS,4)}, {S(sT+2)} offen offset:{512+16*j} sc1")
    a(f"s_mov_b64 exec, -1\ns_branch {lt}")

    a(f"{lh}:\ns_nop 1")
    for j in range(5): a(f"ds_write_b128 v6, {R(ACC+4*j,4)} offset:{1024*j}")
    a.barrier()
    l = if_wave("eq", 4)
    FW = 128
    lf = a.label("nof1w")
    a(f"""s_cmp_lt_u32 {S(sB)}, 216
          s_cbranch_scc0 {lf}
          v_bfe_u32 v56, v1, 2, 2
          v_lshl_add_u32 v56, v3, 3, v56
          v_lshlrev_b32 v56, 4, v56
          v_and_b32 v57, 1, v1
          v_lshl_add_u32 v56, v57, 3, v56
          v_bfe_u32 v57, v1, 1, 1
          v_mul_u32_u24 v57, {L_FU-L_FG}, v57
          v_add_u32 v56, v56, v57
          v_add_u32 v56, {L_FG}, v56""")
    for s in range(20):
        for u in range(2): a(f"ds_read_b64_tr_b16 {R(FW+4*s+2*u,2)}, v56 offset:{512*s + 64*u}")
        if s % 6 == 5: a("s_waitcnt lgkmcnt(2)")
    a(f"{lf}:\nv_lshlrev_b32 v56, 5, v1\ns_mov_b32 {S(sT)}, {W_CAND}")
    sp = spin_begin()
    a(f"""buffer_load_dword v58, v56, {S(WS,4)}, {S(sT)} offen sc1
          buffer_load_dword v59, v56, {S(WS,4)}, {S(sT)} offen offset:2048 sc1
          s_waitcnt vmcnt(0)""")
    poisoncheck([58, 59], 57)
    spin_end(sp)
    a("s_nop 0")
    for rot in (8, 4, 2, 1):
        a(f"v_max_u32_dpp v57, v57, v57 row_ror:{rot} row_mask:0xf bank_mask:0xf\ns_nop 1")
    a(f"""v_readlane_b32 {S(sT)}, v57, 0
          v_readlane_b32 {S(sT+1)}, v57, 16
          v_readlane_b32 {S(sT+2)}, v57, 32
          v_readlane_b32 {S(sT+3)}, v57, 48
          s_nop 3
          s_max_u32 {S(sT)}, {S(sT)}, {S(sT+1)}
          s_max_u32 {S(sT+2)}, {S(sT+2)}, {S(sT+3)}
          s_max_u32 {S(sKEY)}, {S(sT)}, {S(sT+2)}
          v_mov_b32 v56, {L_WIN}
          v_mov_b32 v57, {S(sKEY)}
          ds_write_b32 v56, v57
          {l}:""")
    stamp("H5")
    a.barrier()
    a(f"""s_cmp_lt_u32 {S(sB)}, 216
          s_cbranch_scc0 {lt}
          s_cmp_eq_u32 {S(sW)}, 4
          s_cbranch_scc0 L_fin""")
    a.c("FFN gate/up for 8 hidden units on the selected token")
    HB = 208 - 144
    a(f"""s_and_b32 {S(sT)}, {S(sKEY)}, 2047
          s_sub_u32 {S(sT)}, 2047, {S(sT)}
          s_lshr_b32 {S(sT)}, {S(sT)}, 4
          s_lshl_b32 {S(sT)}, {S(sT)}, 11
          s_add_u32 {S(sT)}, {S(sT)}, {W_H2ROW}
          v_lshlrev_b32 v208, 4, v3
          v_lshrrev_b32 v209, 5, v1
          v_mul_u32_u24 v209, 96, v209
          v_add_u32 v209, v209, v208""")
    HF = 8
    sp = spin_begin()
    for s in range(20):
        c0 = 4 * s
        off = (c0 // 10) * 256 + (c0 % 10) * 16
        a(f"buffer_load_dwordx4 {R(HF+4*s,4)}, v{209 if c0 % 10 == 8 else 208}, {S(WS,4)}, {S(sT)} offen offset:{off} sc1")
    for s in range(20):
        a(f"s_waitcnt vmcnt({19-s})")
        a(f"v_mfma_f32_16x16x32_bf16 v[212:215], {R(FW+4*s,4)}, {R(HF+4*s,4)}, {'0' if s == 0 else 'v[212:215]'}")
        if s == 0: a(f"v_max_u32 v210, {R(HF)}, {R(HF+1)}")
        else: a(f"v_max3_u32 v210, v210, {R(HF+4*s)}, {R(HF+4*s+1)}")
        a(f"v_max3_u32 v210, v210, {R(HF+4*s+2)}, {R(HF+4*s+3)}")
    a("v_cmp_eq_u32 vcc, -1, v210")
    spin_end(sp)
    a("s_nop 4")
    for j in range(4): a(f"v_mov_b32 v{216+j}, v{212+j}")
    a("s_nop 1")
    for j in range(4): a(f"v_permlane32_swap_b32 v{212+j}, v{216+j}")
    for j in range(4): a(f"v_mul_f32 v{220+j}, {hex(fbits(-LOG2E))}, v{212+j}")
    for j in range(4): a(f"v_exp_f32 v{220+j}, v{220+j}")
    for j in range(4): a(f"v_add_f32 v{220+j}, 1.0, v{220+j}")
    for j in range(4): a(f"v_rcp_f32 v{220+j}, v{220+j}")
    for j in range(4): a(f"v_mul_f32 v{212+j}, v{212+j}, v{216+j}")
    for j in range(4): a(f"v_mul_f32 v{212+j}, v{212+j}, v{220+j}")
    a(f"""v_cvt_pk_bf16_f32 v216, v212, v213
          v_cvt_pk_bf16_f32 v217, v214, v215
          s_lshl_b32 {S(sT)}, {S(sFROLE)}, 5
          s_add_u32 {S(sT)}, {S(sT)}, {W_ACT}
          v_lshlrev_b32 v208, 3, v3
          s_mov_b64 exec, 0x10001
          buffer_store_dwordx2 v[216:217], v208, {S(WS,4)}, {S(sT)} offen sc1
          s_mov_b64 exec, -1""")
    stamp("act_pub")
    a("s_branch L_fin")

    a(f"""{lt}:
          s_cmp_ge_u32 {S(sB)}, 216
          s_cbranch_scc0 L_fin
          s_mul_i32 {S(sT)}, {S(sW)}, 7168
          v_lshl_add_u32 v56, v1, 4, {S(sT)}""")
    for k in range(7): a(f"ds_write_b128 v56, {R(FR+4*k,4)} offset:{1024*k}")
    a(f"""v_bfe_u32 v57, v1, 2, 2
          v_lshl_add_u32 v57, v3, 3, v57
          v_lshlrev_b32 v57, 5, v57
          v_and_b32 v58, 3, v1
          v_lshl_add_u32 v57, v58, 3, v57
          v_add_u32 v57, {S(sT)}, v57
          s_waitcnt lgkmcnt(0)""")
    DW, AF = 128, 160
    for k in range(7):
        for u in range(2): a(f"ds_read_b64_tr_b16 {R(DW+4*k+2*u,2)}, v57 offset:{1024*k + 128*u}")
    a(f"""v_lshlrev_b32 v58, 5, v3
          s_mul_i32 {S(sT)}, {S(sW)}, {7*128}
          s_add_u32 {S(sT)}, {S(sT)}, {W_ACT}
          s_cmp_eq_u32 {S(sW)}, 7
          s_cselect_b32 {S(sT+1)}, {W_ACT}, {S(sT)}""")
    l = if_wave("eq", 0)
    a(f"""s_and_b32 {S(sT+2)}, {S(sB)}, 7
          s_lshl_b32 {S(sT+2)}, {S(sT+2)}, 10
          s_lshr_b32 {S(sT+3)}, {S(sB)}, 3
          s_sub_u32 {S(sT+3)}, {S(sT+3)}, 27
          s_lshl_b32 {S(sT+3)}, {S(sT+3)}, 6
          s_add_u32 {S(sT+2)}, {S(sT+2)}, {S(sT+3)}
          s_add_u32 {S(sT+2)}, {S(sT+2)}, {W_BASE}
          v_lshlrev_b32 v59, 2, v2""")
    sp = spin_begin()
    a(f"""buffer_load_dword v60, v59, {S(WS,4)}, {S(sT+2)} offen sc1
          buffer_load_dword v61, v59, {S(WS,4)}, {S(sT+2)} offen offset:512 sc1
          s_waitcnt vmcnt(0)""")
    poisoncheck([60, 61], 62)
    spin_end(sp)
    a(f"""s_and_b32 {S(sT+2)}, {S(sKEY)}, 0xfffff800
          s_not_b32 {S(sT+3)}, {S(sT+2)}
          s_xor_b32 {S(sT+4)}, {S(sT+2)}, 0x80000000
          s_cmp_lt_i32 {S(sT+2)}, 0
          s_cselect_b32 {S(sT+2)}, {S(sT+4)}, {S(sT+3)}
          v_mov_b32 v62, {hex(fbits(-LOG2E))}
          v_mul_f32 v62, {S(sT+2)}, v62
          v_exp_f32 v62, v62
          s_nop 0
          v_add_f32 v62, 1.0, v62
          v_rcp_f32 v62, v62
          s_nop 0
          v_mul_f32 v61, v61, v62
          {l}:
          s_waitcnt lgkmcnt(0)""")
    sp = spin_begin()
    for k in range(7):
        a(f"buffer_load_dwordx4 {R(AF+4*k,4)}, v58, {S(WS,4)}, {S(sT + (1 if k >= 5 else 0))} offen offset:{128*k} sc1")
    a("s_waitcnt vmcnt(0)")
    poisoncheck(range(AF, AF + 28), 63)
    spin_end(sp)
    stamp("H6")
    for k in range(7):
        a(f"v_mfma_f32_16x16x32_bf16 v[212:215], {R(DW+4*k,4)}, {R(AF+4*k,4)}, {'0' if k == 0 else 'v[212:215]'}")
    a(f"""s_lshl_b32 {S(sT)}, {S(sW)}, 6
          s_add_u32 {S(sT)}, {S(sT)}, {L_RED}
          v_lshl_add_u32 v56, v3, 4, {S(sT)}
          s_mov_b32 exec_lo, 0x10001
          s_mov_b32 exec_hi, 0x10001
          s_nop 3
          ds_write_b128 v56, v[212:215]
          s_mov_b64 exec, -1""")
    a.barrier()
    a(f"""s_cmp_eq_u32 {S(sW)}, 0
          s_cbranch_scc0 L_fin
          v_add_u32 v56, {L_RED}, v59""")
    for k in range(8): a(f"ds_read_b32 v{64+k}, v56 offset:{64*k}")
    a(f"""s_and_b32 {S(sT)}, {S(sKEY)}, 2047
          s_sub_u32 {S(sT)}, 2047, {S(sT)}
          s_mul_i32 {S(sT)}, {S(sT)}, 1280
          s_lshl_b32 {S(sT+1)}, {S(sFROLE)}, 5
          s_add_u32 {S(sT)}, {S(sT)}, {S(sT+1)}
          v_lshlrev_b32 v57, 1, v2
          s_waitcnt lgkmcnt(0)
          v_add_f32 v64, v64, v65
          v_add_f32 v66, v66, v67
          v_add_f32 v68, v68, v69
          v_add_f32 v70, v70, v71
          v_add_f32 v64, v64, v66
          v_add_f32 v68, v68, v70
          v_add_f32 v64, v64, v68
          v_fma_f32 v60, v64, v61, v60
          v_cvt_pk_bf16_f32 v60, v60, v60
          s_mov_b64 exec, 0xffff
          buffer_store_short v60, v57, {S(OUT,4)}, {S(sT)} offen
          s_mov_b64 exec, -1""")
    a("L_fin:")
    if cfg.stamps:
        stamp("end")
        a(f"""s_lshl_b32 {S(sT)}, {S(sB)}, 3
              s_add_u32 {S(sT)}, {S(sT)}, {S(sW)}
              s_lshl_b32 {S(sT)}, {S(sT)}, 8
              s_add_u32 {S(sT)}, {S(sT)}, {W_DBG}
              v_lshlrev_b32 v2, 2, v1
              buffer_store_dword v0, v2, {S(WS,4)}, {S(sT)} offen""")
    a("s_endpgm")

    for s, lr, lb in retry:
        a(f"{lr}:")
        sp = spin_begin()
        oload(s)
        a("s_waitcnt vmcnt(0)")
        poisoncheck(range(OF+4*s, OF+4*s+4), 56)
        spin_end(sp)
        for s2 in range(s + 1, 10): oload(s2)
        a(f"s_branch {lb}")

    a("L_slow:")
    M = 180
    a(f"v_mov_b32 {R(M)}, 0xff800000")
    for ps in range(2):
        lp = a.label("slowloop")
        if ps == 1:
            a(f"""v_mov_b32 {R(M+1)}, {R(M)}
                  s_nop 1
                  v_permlane32_swap_b32 {R(M)}, {R(M+1)}
                  v_max_f32 {R(M)}, {R(M)}, {R(M+1)}""")
            for i in range(16): a(f"v_mov_b32 {R(O_+i)}, 0")
        a(f"s_mov_b32 {S(sT+6)}, {W_KV}\n{lp}:")
        a(f"buffer_load_dwordx2 v[164:165], {R(vK8)}, {S(WS,4)}, {S(sT+6)} offen offset:2560 sc1")
        for hb in range(2):
            a(f"buffer_load_dwordx4 v[152:155], {R(vK16)}, {S(WS,4)}, {S(sT+6)} offen sc1")
            if ps == 1:
                a(f"""buffer_load_dwordx4 v[156:159], {R(vV)}, {S(WS,4)}, {S(sT+6)} offen offset:1024 sc1
                      buffer_load_dwordx4 v[160:163], {R(vV)}, {S(WS,4)}, {S(sT+6)} offen offset:1792 sc1""")
            a(f"""s_waitcnt vmcnt(0)
                  v_mfma_f32_32x32x4_2b_bf16 v[192:223], v[164:165], {R(QB,2)}, 0 cbsz:1 abid:{hb}
                  s_nop 15
                  s_nop 3
                  v_mfma_f32_32x32x16_bf16 v[192:207], v[152:155], {R(QA,4)}, v[192:207]
                  s_nop 15""")
            if ps == 0:
                for i in range(0, 16, 2): a(f"v_max3_f32 {R(M)}, {R(M)}, v{192+i}, v{193+i}")
            else:
                for i in range(16): a(f"v_sub_f32 v{192+i}, v{192+i}, {R(M)}")
                for i in range(16): a(f"v_exp_f32 v{192+i}, v{192+i}")
                a(f"""s_nop 2
                      v_smfmac_f32_32x32x32_bf16 {R(O_,16)}, v[156:159], v[192:199], {R(IDX)}
                      v_smfmac_f32_32x32x32_bf16 {R(O_,16)}, v[160:163], v[200:207], {R(IDX)}
                      s_nop 15""")
            a(f"s_add_u32 {S(sT+6)}, {S(sT+6)}, {KVT}")
        a(f"s_cmp_lt_u32 {S(sT+6)}, {W_KV + 64*KVT}\ns_cbranch_scc1 {lp}")
    a("s_branch L_slow_done")
    a("L_end:\ns_endpgm")
    return a.text()

def wrap(body):
    ref = open(f"cdna_kernels/{NAME}.s.ref").read().split("\n")
    head = [l for l in ref if l.startswith(";") and "@launch" not in l]
    return "\n".join(head) + f"""
; @launch grid=(256,1,1) block=(512,1,1) lds=163840
.amdgcn_target "amdgcn-amd-amdhsa--gfx950"
.text
.globl {NAME}_kernel
.p2align 8
.type {NAME}_kernel,@function
{NAME}_kernel:
{body}.section .rodata,"a"
.p2align 6
.amdhsa_kernel {NAME}_kernel
  .amdhsa_next_free_vgpr 256
  .amdhsa_next_free_sgpr 102
  .amdhsa_accum_offset 256
  .amdhsa_group_segment_fixed_size 0
  .amdhsa_kernarg_size 120
  .amdhsa_user_sgpr_count 2
  .amdhsa_user_sgpr_kernarg_segment_ptr 1
  .amdhsa_system_sgpr_workgroup_id_x 1
.end_amdhsa_kernel
"""

if __name__ == "__main__":
    import json
    cfg = Cfg()
    out = f"cdna_kernels/{NAME}.s"
    for arg in sys.argv[1:]:
        k, v = arg.split("=", 1)
        if k == "out": out = v
        else: setattr(cfg, k, json.loads(v))
    open(out, "w").write(wrap(gen(cfg)))
    if cfg.stamps: json.dump(cfg.stamp_names, open(out + ".stamps", "w"))
```

```python
import sys, struct
from asmlib import Asm, R, S

NAME = "adaLN_cond__grouped_kv_mqa__moe_arch_mod__prompt"
def fbits(x): return struct.unpack("<I", struct.pack("<f", x))[0]
LOG2E = 1.4426950408889634
KSCALE = 20 ** -0.5 * LOG2E

W_EPOCH = 0
W_MODP = 0x1000
W_KVF = 0x10000
W_CAND = 0x12000
W_ACT = 0x13000
W_BASE = 0x1A000
W_H2ROW = 0x1C000
W_PF = 0x2C000
W_STATS = 0x30000
W_KV = 0xA0000
W_O = 0x100000
W_DBG = 0x400000
W_SIZE = 0x800000
OOB = 0x7f000000
KVT = 3072
ASTR = 64
L_XS = 0
L_WKV = 81920
L_WQ1 = 107520
L_ST1 = 148480
L_MODF = 150528
L_KVP = 155648
L_LT = 161792
L_WQ2 = 0
L_QP = 81920
L_QS = 61440
QSTR = 208
L_WO = 0
L_FG = 0
L_FU = 10304
L_WP = 102400
L_PART = 123136
L_MB = 160000
L_WIN = 161792
L_KEYS = 161808
L_RED = 161920
sB, sW, sTG, sHG, sKQ, sTH = 2, 3, 4, 5, 6, 7
X, WQ, WKV, WO, WM, C, WS, OUT, WR, F = 8, 12, 16, 20, 24, 28, 32, 36, 40, 44
sTAG = 48
sSPIN = 49
sT = 50
sKT = 60
sF0, sFSTEP, sFROLE, sM0 = 76, 77, 78, 79
sPTR = 80
sOST, sOLD, sXO, sMSO, sMOUT = 80, 81, 82, 83, 84
sWOFF = 90
GU, DN = 28, 96
sTB = 86
sFAST, sPFV, sFMAX = 85, 91, 92
sKEY = 93
sEX = 94
sEXA = 93
SPIN_MAX = 50000

class Cfg:
    stamps = False
    depth = 3
    prio = [4, 13, 15]
    quiet = 0
    p_at = 9
    h1pre = False
    wtouch = 2
    sl1 = 8
    sl1r = 2
    force_slow = False
    dbgout = False
    only = None
    sl4 = 4
    sl5 = 2
    sl6 = 20
    outsc = ''
    rot = True
    npre = 7
    xp = ''
    h2at = 9
    fsc = ''
    f_at = [12, 15, 18, 21, 24, 27, 28]
    wo_at = [10, 11, 13, 14, 16, 17, 19, 20, 22, 23, 25, 26, 28]
    wsc = ''
    clk = True
    tsc = ''
    msc = 'nt'
    qsc = ''
    xsc = ''
    tch_at = [0, 2, 4, 6]
    t_at = 17
    late_at = 29
    sld = 'sc1'

def srd(a, base, size):
    a(f"s_mov_b32 {S(base+2)}, {size}\ns_mov_b32 {S(base+3)}, 0x20000")

def gen(cfg):
    a = Asm()
    stamp_n = [0]
    def stamp(name):
        if not cfg.stamps or (cfg.only and name not in cfg.only): return
        i = stamp_n[0]; stamp_n[0] += 1
        a.c(f"stamp {i} {name}")
        a(f"s_memrealtime s[100:101]\ns_waitcnt lgkmcnt(0)\nv_writelane_b32 v0, s100, {i}")
        if cfg.clk: a(f"s_memtime s[100:101]\ns_waitcnt lgkmcnt(0)\nv_writelane_b32 v0, s100, {32+i}")
        a.lg = []
        cfg.stamp_names.append(name)
    cfg.stamp_names = []

    def spin_begin():
        lab = a.label("spin")
        a(f"s_mov_b32 {S(sSPIN)}, 0\n{lab}:")
        return lab
    def spin_end(lab):
        done = a.label("got")
        a(f"""s_cbranch_vccz {done}
              s_add_u32 {S(sSPIN)}, {S(sSPIN)}, 1
              s_cmp_lt_u32 {S(sSPIN)}, {SPIN_MAX}
              s_cbranch_scc1 {lab}
              {done}:""")
    def if_wave(cond, val):
        lab = a.label("skip")
        a(f"s_cmp_{cond}_u32 {S(sW)}, {val}\ns_cbranch_scc0 {lab}")
        return lab
    def tagcheck(p, err):
        for j in range(16): a(f"v_xor_b32 {R(p+j)}, {S(sTB+(j&3))}, {R(p+j)}")
        a(f"v_or_b32 {R(err)}, {R(p)}, {R(p+1)}")
        for j in range(2, 16, 2): a(f"v_or3_b32 {R(err)}, {R(err)}, {R(p+j)}, {R(p+j+1)}")
        a(f"v_and_b32 {R(err)}, 0xff, {R(err)}\nv_cmp_ne_u32 vcc, 0, {R(err)}")
    def poisoncheck(regs, t):
        regs = list(regs)
        if len(regs) == 1:
            a(f"v_cmp_eq_u32 vcc, -1, {R(regs[0])}"); return
        if len(regs) % 2 == 0:
            a(f"v_max_u32 {R(t)}, {R(regs[0])}, {R(regs[1])}"); rest = regs[2:]
        else:
            a(f"v_max3_u32 {R(t)}, {R(regs[0])}, {R(regs[1])}, {R(regs[2])}"); rest = regs[3:]
        for i in range(0, len(rest), 2):
            a(f"v_max3_u32 {R(t)}, {R(t)}, {R(rest[i])}, {R(rest[i+1])}")
        a(f"v_cmp_eq_u32 vcc, -1, {R(t)}")
    def div10(idx, row, pc):
        a(f"""v_mul_u32_u24 {R(row)}, 6554, {R(idx)}
              v_lshrrev_b32 {R(row)}, 16, {R(row)}
              v_mul_u32_u24 {R(pc)}, 10, {R(row)}
              v_sub_u32 {R(pc)}, {R(idx)}, {R(pc)}""")

    def mod_index(pair, half, so, sout, sc):
        a(f"""s_and_b32 {S(sc)}, {S(pair)}, 3
              s_lshr_b32 {S(pair)}, {S(pair)}, 2
              s_lshl_b32 {S(pair)}, {S(pair)}, 1
              s_add_u32 {S(pair)}, {S(pair)}, {S(half)}
              s_mul_i32 {S(so)}, {S(sc)}, {160*7680}
              s_lshl_b32 {S(half)}, {S(pair)}, 6
              s_add_u32 {S(so)}, {S(so)}, {S(half)}
              s_mul_i32 {S(sout)}, {S(sc)}, 15360
              s_lshl_b32 {S(half)}, {S(pair)}, 7
              s_add_u32 {S(sout)}, {S(sout)}, {S(half)}
              s_add_u32 {S(sout)}, {S(sout)}, {W_MODP}
              s_mul_i32 {S(sc)}, {S(sc)}, 320""")
    def mod_c(craw, t0, sc):
        a(f"v_lshrrev_b32 {R(t0)}, 2, v1\nv_mul_u32_u24 {R(t0)}, 20, {R(t0)}")
        a.vmem(f"buffer_load_dwordx4 {R(craw,4)}, {R(t0)}, {S(C,4)}, {S(sc)} offen", "c")
        a.vmem(f"buffer_load_dword {R(craw+4)}, {R(t0)}, {S(C,4)}, {S(sc)} offen offset:16", "c")
    def mod_w(wregs, t0, so):
        a(f"""v_lshrrev_b32 {R(t0)}, 2, v1
              v_mul_u32_u24 {R(t0)}, 76800, {R(t0)}
              v_and_b32 {R(t0+1)}, 3, v1
              v_lshl_add_u32 {R(t0)}, {R(t0+1)}, 4, {R(t0)}""")
        for i in range(10):
            a.vmem(f"buffer_load_dwordx4 {R(wregs[i],4)}, {R(t0)}, {S(WM,4)}, {S(so)} offen {cfg.msc}", ("wm", i))
            if i < 9: a(f"s_add_u32 {S(so)}, {S(so)}, 7680")
    def mod_silu(craw, lo, hi):
        a.wvm("c")
        for i in range(10):
            a(f"v_and_b32 {R(lo+i)}, 0xffff0000, {R(craw+i//2)}" if i & 1 else f"v_lshlrev_b32 {R(lo+i)}, 16, {R(craw+i//2)}")
        for i in range(10): a(f"v_mul_f32 {R(hi+i)}, {hex(fbits(-LOG2E))}, {R(lo+i)}")
        for i in range(10): a(f"v_exp_f32 {R(hi+i)}, {R(hi+i)}")
        for i in range(10): a(f"v_add_f32 {R(hi+i)}, 1.0, {R(hi+i)}")
        for i in range(10): a(f"v_rcp_f32 {R(hi+i)}, {R(hi+i)}")
        for i in range(10): a(f"v_mul_f32 {R(hi+i)}, {R(hi+i)}, {R(lo+i)}")
        for i in range(10): a(f"v_cvt_pk_bf16_f32 {R(lo+i)}, {R(hi+i)}, 0")
        for i in range(10): a(f"v_lshlrev_b32 {R(hi+i)}, 16, {R(lo+i)}")
    def mod_dot(wregs, lo, hi, acc, t0, sout):
        a(f"""v_bfe_u32 {R(t0)}, v1, 4, 1
              v_lshlrev_b32 {R(t0)}, 4, {R(t0)}
              v_lshrrev_b32 {R(t0)}, {R(t0)}, {S(sTAG)}
              v_lshrrev_b32 {R(t0+1)}, 8, {R(t0)}
              v_and_b32 {R(t0+2)}, 3, v1
              v_lshlrev_b32 {R(t0+2)}, 5, {R(t0+2)}
              v_lshl_add_u32 {R(t0+2)}, v3, 3, {R(t0+2)}
              v_and_b32 {R(t0+3)}, 12, v1
              v_lshl_add_u32 {R(t0+2)}, {R(t0+3)}, 26, {R(t0+2)}
              s_movk_i32 {S(sT)}, 0xff""")
        for i in range(10):
            a.wvm(("wm", i))
            for m in range(4):
                for hh, sv in ((0, lo), (1, hi)):
                    c_in = "0" if i == 0 else R(acc + 2*m + hh)
                    a(f"v_dot2_f32_bf16 {R(acc+2*m+hh)}, {R(wregs[i]+m)}, {R(sv+i)}, {c_in}")
        a("s_nop 2")
        for k in range(4): a(f"v_permlane32_swap_b32 {R(acc+k)}, {R(acc+k+4)}")
        for k in range(4): a(f"v_add_f32 {R(acc+k)}, {R(acc+k)}, {R(acc+k+4)}")
        a("s_nop 1")
        for k in range(2): a(f"v_permlane16_swap_b32 {R(acc+k)}, {R(acc+k+2)}")
        for k in range(2): a(f"v_add_f32 {R(acc+k)}, {R(acc+k)}, {R(acc+k+2)}")
        a("s_nop 1")
        for k in range(2): a(f"v_add_f32_dpp {R(acc+k)}, {R(acc+k)}, {R(acc+k)} row_ror:8 row_mask:0xf bank_mask:0xf")
        a("s_nop 1")
        for k in range(2): a(f"v_add_f32_dpp {R(acc+k)}, {R(acc+k)}, {R(acc+k)} row_ror:4 row_mask:0xf bank_mask:0xf")
        for k in range(2): a(f"v_bfi_b32 {R(acc+k)}, {S(sT)}, {R(t0+k)}, {R(acc+k)}")
        a.vmem(f"buffer_store_dwordx2 {R(acc,2)}, {R(t0+2)}, {S(WS,4)}, {S(sout)} offen sc1", "modst")
    def sum4_round(p, one):
        for j in range(2):
            a(f"""v_pk_add_f32 {R(p+2*j,2)}, {R(p+2*j,2)}, {R(p+4+2*j,2)}
                  v_pk_add_f32 {R(p+8+2*j,2)}, {R(p+8+2*j,2)}, {R(p+12+2*j,2)}""")
        for j in range(2): a(f"v_pk_add_f32 {R(p+2*j,2)}, {R(p+2*j,2)}, {R(p+8+2*j,2)}")
        for j in range(4): a(f"v_cvt_pk_bf16_f32 {R(p+j)}, 0, {R(p+j)}")
        for j in range(4): a(f"v_add_f32 {R(p+j)}, {one}, {R(p+j)}")
        for j in range(4): a(f"v_cvt_pk_bf16_f32 {R(p+j)}, 0, {R(p+j)}")
    def if_s(reg, cond, val, lab=None):
        lab = lab or a.label("skip")
        a(f"s_cmp_{cond}_u32 {S(reg)}, {val}\ns_cbranch_scc0 {lab}")
        return lab

    vK16, vK8, vV, IDX = 4, 5, 6, 7
    QAD = 28
    AB, A2a, A2b, A4a, A4b, vOL, vXO = 56, 57, 58, 59, 60, 61, 62
    WOA, vF, vOS = 168, 173, 174
    FA = 8
    if cfg.stamps: a("s_memrealtime s[98:99]")
    a(f"""s_load_dwordx2 {S(WM,2)}, s[0:1], 88
          s_load_dwordx2 {S(C,2)}, s[0:1], 80
          s_load_dwordx2 {S(X,2)}, s[0:1], 0
          s_load_dwordx2 {S(WS,2)}, s[0:1], 112
          s_cmp_ge_u32 s2, 256
          s_cbranch_scc1 L_end
          s_getpc_b64 {S(sT,2)}
          L_pc0:
          v_lshrrev_b32 v2, 6, v0
          s_and_b32 {S(sT+2)}, {S(sB)}, 0xf8
          v_add_u32 v3, {S(sT+2)}, v2
          v_and_b32 v1, 63, v0
          v_readfirstlane_b32 {S(sW)}, v2
          v_lshlrev_b32 v3, 7, v3
          global_load_dword v15, v3, {S(sT,2)}
          s_mov_b32 {S(WM+3)}, 0x20000
          s_mov_b32 {S(WM+2)}, {640*7680}
          s_mov_b32 {S(C+3)}, {S(WM+3)}
          s_movk_i32 {S(C+2)}, 1280
          s_and_b32 {S(sT+2)}, {S(sB)}, 3
          s_lshr_b32 {S(sT)}, {S(sB)}, 4
          s_lshl_b32 {S(sT)}, {S(sT)}, 2
          s_bfe_u32 {S(sT+1)}, {S(sB)}, 0x10002
          s_lshl_b32 {S(sT+1)}, {S(sT+1)}, 1
          s_add_u32 {S(sT)}, {S(sT)}, {S(sT+1)}
          s_bfe_u32 {S(sT+1)}, {S(sB)}, 0x10003
          s_add_u32 {S(sT)}, {S(sT)}, {S(sT+1)}
          s_mul_i32 {S(sT+8)}, {S(sT+2)}, {160*7680}
          s_lshl_b32 {S(sT+1)}, {S(sT)}, 6
          s_add_u32 {S(sT+8)}, {S(sT+8)}, {S(sT+1)}
          v_lshrrev_b32 v10, 2, v1
          v_mul_u32_u24 v12, 76800, v10
          v_and_b32 v13, 3, v1
          v_lshl_add_u32 v12, v13, 4, v12
          v_mul_u32_u24 v10, 20, v10
          s_mul_i32 {S(sT+3)}, {S(sT+2)}, 320
          s_and_b32 {S(sTG)}, {S(sB)}, 31
          s_lshr_b32 {S(sHG)}, {S(sB)}, 5
          s_lshl_b32 {S(sT+1)}, {S(sTG)}, 3
          s_add_u32 {S(sT+1)}, {S(sT+1)}, {S(sHG)}
          s_lshl_b32 {S(sT+1)}, {S(sT+1)}, 3
          s_add_u32 {S(sT+1)}, {S(sT+1)}, {S(sW)}
          s_mul_i32 {S(sT+1)}, {S(sT+1)}, 10
          v_min_u32 v16, 9, v1
          v_add_lshl_u32 v16, v16, {S(sT+1)}, 7
          v_mov_b32 v17, 0
          s_mul_i32 {S(sT+1)}, {S(sW)}, 160
          s_add_u32 {S(sT+1)}, {S(sT+1)}, {S(sB)}
          s_cmp_lt_u32 {S(sT+1)}, 160
          s_waitcnt lgkmcnt(0)
          global_load_dword v63, v17, {S(WS,2)} sc1
          global_load_dword v15, v16, {S(X,2)}
          s_cbranch_scc0 L_nomod
          s_setprio 3""")
    MWE = [216 + 4*i for i in range(10)]
    MC, MLO, MHI = 208, 34, 44
    a.c("wave 0 of 160 workgroups: shift / scale columns of the modulation")
    a(f"buffer_load_dwordx4 {R(MC,4)}, v10, {S(C,4)}, {S(sT+3)} offen\nbuffer_load_dword {R(MC+4)}, v10, {S(C,4)}, {S(sT+3)} offen offset:16")
    for i in range(10):
        a(f"buffer_load_dwordx4 {R(MWE[i],4)}, v12, {S(WM,4)}, {S(sT+8)} offen {cfg.msc}")
        if i < 9: a(f"s_addk_i32 {S(sT+8)}, 7680")
    a(f"""s_mul_i32 {S(sT+9)}, {S(sT+2)}, 15360
          s_lshl_b32 {S(sT)}, {S(sT)}, 7
          s_add_u32 {S(sT+9)}, {S(sT+9)}, {S(sT)}
          s_add_u32 {S(sT+9)}, {S(sT+9)}, {W_MODP}
          L_nomod:
          s_load_dwordx2 {S(WQ,2)}, s[0:1], 8
          s_load_dwordx4 {S(sPTR,4)}, s[0:1], 16""")
    vE = 63
    if cfg.stamps:
        a("v_mov_b32 v0, 0\ns_nop 1\nv_writelane_b32 v0, s98, 0")
        stamp_n[0] = 1; cfg.stamp_names.append("entry")
    for r in (WS, X, WQ, WKV): a(f"s_mov_b32 {S(r+3)}, {S(WM+3)}")
    a(f"""s_mov_b32 {S(WS+2)}, {W_SIZE}
          s_mov_b32 {S(X+2)}, {2048*1280}
          s_mov_b32 {S(WQ+2)}, {640*1280}
          s_movk_i32 {S(WKV+2)}, 25600
          s_and_b32 {S(sKQ)}, {S(sW)}, 3
          s_lshr_b32 {S(sTH)}, {S(sW)}, 2
          v_lshlrev_b32 {R(vK16)}, 4, v1
          v_lshrrev_b32 v3, 4, v1""")
    stamp("karg")
    def tag_from_epoch():
        a(f"""v_readfirstlane_b32 {S(sTAG)}, {R(vE)}
              s_getreg_b32 {S(sPFV)}, hwreg(HW_REG_XCC_ID, 0, 4)
              s_nop 2
              s_add_u32 {S(sTAG)}, {S(sTAG)}, 0x01010101
              s_xor_b32 {S(sPFV)}, {S(sPFV)}, {S(sTAG)}""")
    def tag_bytes():
        a(f"""s_and_b32 {S(sTB)}, {S(sTAG)}, 0xff
              s_bfe_u32 {S(sTB+1)}, {S(sTAG)}, 0x80008
              s_bfe_u32 {S(sTB+2)}, {S(sTAG)}, 0x80010
              s_lshr_b32 {S(sTB+3)}, {S(sTAG)}, 24""")
    L_set = a.label("setup"); L_dma = a.label("dma")
    if_s(sW, "lt", 4, L_dma)
    if_s(sW, "eq", 0, L_set)
    if_s(sB, "lt", 160, L_set)
    a.vm = ["c"] + [("wm", i) for i in range(10)]
    mod_silu(MC, MLO, MHI)
    tag_from_epoch()
    mod_dot(MWE, MLO, MHI, 64, 72, sT+9)
    stamp("modpub")
    a(f"s_setprio 0\ns_branch {L_set}\n{L_dma}:\ns_setprio 2")
    a(f"""s_sub_u32 {S(sT)}, {S(sB)}, 16
          s_and_b32 {S(sT+1)}, {S(sT)}, 3
          s_lshr_b32 {S(sT)}, {S(sT)}, 2
          s_mul_i32 {S(sT+9)}, {S(sT+1)}, 15360
          s_lshl_b32 {S(sT+2)}, {S(sT)}, 8
          s_add_u32 {S(sT+9)}, {S(sT+9)}, {S(sT+2)}
          s_add_u32 {S(sT+9)}, {S(sT+9)}, {W_MODP}
          s_lshl_b32 {S(sT+1)}, {S(sT+1)}, 2
          s_add_u32 {S(sT+1)}, {S(sT+1)}, {S(sKQ)}
          s_mul_i32 {S(sT+8)}, {S(sT+1)}, {40*7680}
          s_lshl_b32 {S(sT+2)}, {S(sT)}, 7
          s_add_u32 {S(sT+8)}, {S(sT+8)}, {S(sT+2)}
          s_mul_i32 {S(sT+1)}, {S(sT+1)}, 80
          v_lshrrev_b32 v10, 3, v1
          v_lshlrev_b32 v10, 1, v10""")
    for i in range(5): a(f"buffer_load_ushort {R(MC+i)}, v10, {S(C,4)}, {S(sT+1)} offen offset:{16*i}")
    a(f"{L_set}:")
    stamp("issued")

    a(f"""s_load_dwordx2 {S(WO,2)}, s[0:1], 32
          s_load_dwordx2 {S(WR,2)}, s[0:1], 48
          s_load_dwordx2 {S(OUT,2)}, s[0:1], 96
          s_load_dwordx4 {S(sPTR+4,4)}, s[0:1], 56
          s_load_dwordx2 {S(sPTR+8,2)}, s[0:1], 72
          v_and_b32 v2, 15, v1
          v_lshlrev_b32 {R(vK8)}, 3, v1
          v_mov_b32 {R(IDX)}, 0xdddddddd""")
    a.c("weight-slice DMA offsets: piece 64*(8j+w)+l of a [rows][10 x 16 B] image")
    a(f"s_lshl_b32 {S(sT)}, {S(sW)}, 6\nv_add_u32 v64, {S(sT)}, v1\ns_lshl_b32 {S(sM0)}, {S(sW)}, 10\ns_mul_i32 {S(sWOFF)}, {S(sHG)}, 160")
    for j in range(5):
        div10(64, 65, 66)
        a(f"v_mul_u32_u24 v65, 1280, v65\nv_lshl_add_u32 {R(WOA+j)}, v66, 4, v65")
        if j < 4: a("v_add_u32 v64, 512, v64")
    a.c("V fragment rows: 20 value rows, two all-ones rows, the rest read as zero")
    a(f"""v_and_b32 v64, 31, v1
          v_lshrrev_b32 v65, 5, v1
          v_mul_u32_u24 v66, 20, v65
          v_add_u32 v66, v66, v64
          v_cmp_lt_u32 vcc, 19, v64
          v_subrev_u32 v67, 2, v66
          v_mov_b32 v68, 40
          v_cndmask_b32 v66, v66, v67, vcc
          v_and_b32 v67, 27, v64
          v_cmp_eq_u32 vcc, 18, v67
          v_mov_b32 v69, {OOB >> 4}
          s_mov_b32 {S(sT)}, 0xff880000
          v_cndmask_b32 v66, v66, v68, vcc
          s_mov_b32 {S(sT+1)}, 0xff880000
          s_nop 0
          v_cndmask_b32 v66, v66, v69, {S(sT,2)}
          v_lshlrev_b32 {R(vV)}, 4, v66""")
    a.c("key tiles of this wave's quarter, start rotated per workgroup")
    a(f"""s_mul_i32 {S(sT)}, {S(sKQ)}, {16*KVT}
          s_add_u32 {S(sT)}, {S(sT)}, {W_KV}
          s_bfe_u32 {S(sT+1)}, {S(sB)}, {0x30003 if cfg.rot else 0}""")
    for p in range(8):
        a(f"""s_mul_i32 {S(sKT+2*p)}, {S(sT+1)}, {2*KVT}
              s_add_u32 {S(sKT+2*p)}, {S(sKT+2*p)}, {S(sT)}
              s_add_u32 {S(sKT+2*p+1)}, {S(sKT+2*p)}, {KVT}""")
        if p < 7: a(f"s_add_u32 {S(sT+1)}, {S(sT+1)}, 1\ns_and_b32 {S(sT+1)}, {S(sT+1)}, 7")
    a.c("Q fragment addresses; local tile i is q-tile 4*(w>>2) + ((w+i)&3); o store offsets")
    a(f"""v_and_b32 v64, 7, v1
          v_bfe_u32 v66, v1, 3, 2
          v_lshlrev_b32 v67, 4, v64
          v_lshl_add_u32 v67, v65, 10, v67
          v_lshl_add_u32 {R(vOS+1)}, v66, 2, v67
          v_add_u32 {R(vOS+1)}, 8192, {R(vOS+1)}
          v_lshl_add_u32 {R(vOS)}, v66, 11, v67
          v_mul_u32_u24 v64, {QSTR}, v64
          v_mul_u32_u24 v66, 48, v66
          v_lshlrev_b32 v67, 4, v65
          v_add3_u32 v64, v64, v66, v67
          s_and_b32 {S(sT)}, {S(sW)}, 4""")
    for i in range(4):
        a(f"""s_add_u32 {S(sT+1)}, {S(sW)}, {i}
              s_and_b32 {S(sT+1)}, {S(sT+1)}, 3
              s_or_b32 {S(sT+1)}, {S(sT+1)}, {S(sT)}
              s_mul_i32 {S(sT+1)}, {S(sT+1)}, {8*QSTR}
              s_add_u32 {S(sT+1)}, {S(sT+1)}, {L_QS}
              v_add_u32 {R(QAD+i)}, {S(sT+1)}, v64""")
    a.c("wo row addresses follow the channel order of the o chunks")
    a(f"""v_cmp_lt_u32 vcc, 31, v1
          v_bfe_u32 v68, v1, 2, 2
          v_bfe_u32 v69, v1, 4, 1
          v_cndmask_b32 {R(QAD+4)}, {R(QAD)}, {R(QAD+1)}, vcc
          v_cndmask_b32 {R(QAD+5)}, {R(QAD+2)}, {R(QAD+3)}, vcc
          v_sub_u32 {R(QAD+4)}, {R(QAD+4)}, v67
          v_sub_u32 {R(QAD+5)}, {R(QAD+5)}, v67
          v_lshl_add_u32 v70, v69, 2, v68
          v_mul_u32_u24 v71, 20, v65
          v_add_u32 v71, v71, v70
          v_lshrrev_b32 v72, 1, v68
          v_mul_u32_u24 v72, 20, v72
          v_and_b32 v73, 1, v68
          v_lshl_add_u32 v72, v69, 1, v72
          v_add3_u32 v72, v72, v73, 16
          v_and_b32 v73, 3, v1
          v_mul_u32_u24 v74, 40, v73
          s_mul_i32 {S(sT)}, {S(sTH)}, 51200
          v_mul_u32_u24 v71, 160, v71
          v_mul_u32_u24 v72, 160, v72
          v_add3_u32 {R(AB)}, v71, v74, {S(sT)}
          v_add3_u32 v72, v72, v74, {S(sT)}
          v_add_u32 v75, {60*160}, {R(AB)}
          v_add_u32 v76, {68*160}, {R(AB)}
          v_add_u32 v77, {40*160}, v72
          v_cndmask_b32 {R(A2a)}, v72, v75, vcc
          v_cndmask_b32 {R(A2b)}, v77, v76, vcc
          v_add_u32 v75, {140*160}, {R(AB)}
          v_add_u32 v76, {148*160}, {R(AB)}
          v_add_u32 v77, {80*160}, v72
          v_add_u32 v72, {120*160}, v72
          v_cndmask_b32 {R(A4a)}, v75, v77, vcc
          v_cndmask_b32 {R(A4b)}, v76, v72, vcc
          v_lshlrev_b32 v75, 4, v2
          v_lshl_add_u32 {R(vOL)}, v3, 10, v75
          v_mul_u32_u24 v75, 1280, v2
          v_mul_u32_u24 v76, 40, v3
          v_add_u32 {R(vXO)}, v75, v76""")
    a.c("front-phase LDS addresses: k-step 4g+kq, rows 16*(kg>>1) + 4*(kg&1) + r")
    aX, aMOD, aKVW, aWQ2, aWQ1, aH1, aST = FA, FA+2, FA+3, 54, 55, FA+4, FA+5
    a(f"""s_lshl_b32 {S(sT)}, {S(sKQ)}, 5
          v_lshl_add_u32 v70, v65, 4, v70
          v_add_u32 v70, {S(sT)}, v70
          v_sub_u32 v71, v70, v68
          v_lshlrev_b32 v71, 2, v71
          v_add_u32 {R(aMOD)}, {L_MODF}, v71
          v_mul_u32_u24 v71, 40, v70
          v_lshl_add_u32 v71, v73, 3, v71
          v_add_u32 {R(aKVW)}, {L_WKV}, v71
          v_mul_u32_u24 v71, 160, v70
          v_add_u32 {R(aWQ2)}, v71, v74
          v_add_u32 {R(aWQ1)}, {L_WQ1}, {R(aWQ2)}
          v_lshrrev_b32 v70, 1, v2
          v_and_b32 v71, 2, v3
          s_and_b32 {S(sT)}, {S(sKQ)}, 1
          s_lshl_b32 {S(sT)}, {S(sT)}, 2
          v_or_b32 v71, {S(sT)}, v71
          v_xor_b32 v70, v70, v71
          v_lshlrev_b32 v70, 4, v70
          v_lshl_add_u32 v70, v69, 3, v70
          v_and_b32 v71, 7, v2
          v_lshl_add_u32 v70, v71, 7, v70
          v_lshrrev_b32 v71, 3, v2
          v_mul_u32_u24 v71, 10240, v71
          s_mul_i32 {S(sT)}, {S(sTH)}, 40960
          s_lshr_b32 {S(sT+1)}, {S(sKQ)}, 1
          s_lshl_b32 {S(sT+1)}, {S(sT+1)}, 10
          s_add_u32 {S(sT)}, {S(sT)}, {S(sT+1)}
          v_add3_u32 {R(aX)}, v70, v71, {S(sT)}
          v_xor_b32 {R(aX+1)}, 16, {R(aX)}
          s_mul_i32 {S(sT)}, {S(sW)}, 640
          v_add_u32 {R(aH1)}, {S(sT)}, {R(vK16)}
          s_lshl_b32 {S(sT)}, {S(sTH)}, 10
          s_add_u32 {S(sT)}, {S(sT)}, {L_ST1}
          v_lshl_add_u32 {R(aST)}, v2, 5, {S(sT)}
          s_lshl_b32 {S(sT)}, {S(sKQ)}, 3
          v_add_u32 {R(aST+1)}, {S(sT)}, {R(aST)}
          s_cmp_lt_u32 {S(sHG)}, 4
          s_waitcnt lgkmcnt(0)
          s_cselect_b32 {S(WKV)}, {S(sPTR)}, {S(sPTR+2)}
          s_cselect_b32 {S(WKV+1)}, {S(sPTR+1)}, {S(sPTR+3)}""")
    srd(a, WO, 640*1280); srd(a, OUT, 2048*1280); srd(a, WR, 1280); srd(a, F, 640*3456)
    l1 = a.label("f2"); lj = a.label("fset")
    a(f"""s_and_b32 {S(sT)}, {S(sB)}, 7
          s_lshr_b32 {S(sT+1)}, {S(sB)}, 3
          s_cmp_lt_u32 {S(sB)}, {256 if 'G' in cfg.xp else 216}
          s_cbranch_scc0 {l1}
          s_mul_i32 {S(sFROLE)}, {S(sT)}, {24 if 'G' in cfg.xp else 27}
          s_add_u32 {S(sFROLE)}, {S(sFROLE)}, {S(sT+1)}
          s_cmp_lt_u32 {S(sW)}, 4
          s_cselect_b32 {S(F)}, {S(sPTR+4)}, {S(sPTR+6)}
          s_cselect_b32 {S(F+1)}, {S(sPTR+5)}, {S(sPTR+7)}
          s_mul_i32 {S(sF0)}, {S(sKQ)}, {160*3456}
          s_lshl_b32 {S(sT)}, {S(sFROLE)}, 4
          s_add_u32 {S(sF0)}, {S(sF0)}, {S(sT)}
          s_mov_b32 {S(sFSTEP)}, {32*3456}
          s_add_u32 {S(sFMAX)}, {S(sF0)}, {128*3456}
          s_mov_b32 {S(sEXA)}, 0xffff
          v_lshl_add_u32 v64, v65, 4, v2
          v_mul_u32_u24 {R(vF)}, 3456, v64
          s_branch {lj}
          {l1}:
          s_mul_i32 {S(sFROLE)}, {S(sT)}, 5
          s_sub_u32 {S(sT+1)}, {S(sT+1)}, 27
          s_add_u32 {S(sFROLE)}, {S(sFROLE)}, {S(sT+1)}
          s_mov_b32 {S(F)}, {S(sPTR+8)}
          s_mov_b32 {S(F+1)}, {S(sPTR+9)}
          s_mul_i32 {S(sF0)}, {S(sW)}, {224*1280}
          s_lshl_b32 {S(sT)}, {S(sFROLE)}, 5
          s_add_u32 {S(sF0)}, {S(sF0)}, {S(sT)}
          s_mov_b32 {S(sFSTEP)}, {32*1280}
          s_add_u32 {S(sFMAX)}, {S(sT)}, {1696*1280}
          s_mov_b32 {S(sEXA)}, -1
          v_lshrrev_b32 v64, 1, v1
          v_mul_u32_u24 v64, 1280, v64
          v_and_b32 v65, 1, v1
          v_lshl_add_u32 {R(vF)}, v65, 4, v64
          {lj}:
          s_bitcmp0_b32 {S(sW)}, 0
          s_cselect_b32 {S(GU)}, {S(sPTR+4)}, {S(sPTR+6)}
          s_cselect_b32 {S(GU+1)}, {S(sPTR+5)}, {S(sPTR+7)}
          s_mov_b32 {S(GU+2)}, {S(F+2)}
          s_mov_b32 {S(DN)}, {S(sPTR+8)}
          s_mov_b32 {S(DN+1)}, {S(sPTR+9)}
          s_mov_b32 {S(DN+2)}, {S(F+2)}
          s_mov_b32 {S(DN+3)}, 0x20000
          s_mul_i32 {S(sT)}, {S(sTG)}, 81920
          s_add_u32 {S(sT)}, {S(sT)}, {W_O}
          s_mul_i32 {S(sOST)}, {S(sHG)}, 10240
          s_lshl_b32 {S(sT+1)}, {S(sW)}, 7
          s_add_u32 {S(sOST)}, {S(sOST)}, {S(sT+1)}
          s_add_u32 {S(sOST)}, {S(sOST)}, {S(sT)}
          s_mul_i32 {S(sOLD)}, {S(sTH)}, 40960
          s_lshl_b32 {S(sT+1)}, {S(sKQ)}, 8
          s_add_u32 {S(sOLD)}, {S(sOLD)}, {S(sT+1)}
          s_add_u32 {S(sOLD)}, {S(sOLD)}, {S(sT)}
          s_lshl_b32 {S(sT)}, {S(sTG)}, 2
          s_add_u32 {S(sT)}, {S(sT)}, {S(sKQ)}
          s_mul_i32 {S(sXO)}, {S(sT)}, {16*1280}
          s_add_u32 {S(sXO)}, {S(sXO)}, {S(sWOFF)}
          s_mov_b32 {S(sMSO)}, {S(sT+8)}
          s_mov_b32 {S(sMOUT)}, {S(sT+9)}""")
    stamp("setup")
    L_bx = a.label("bx")
    l = if_wave("ge", 4)
    a.c("waves 4..7: x tile (16 tokens per wave, xor-swizzled 16-byte pieces) and wk|wv -> LDS")
    a(f"""v_lshrrev_b32 v64, 3, v1
          v_and_b32 v66, 7, v1
          v_xor_b32 v65, v66, v3
          v_mul_u32_u24 v64, 1280, v64
          v_lshl_add_u32 v64, v65, 4, v64
          v_xor_b32 v65, 64, v64
          v_add_u32 v65, {8*1280}, v65
          s_add_u32 {S(sT)}, {S(sKQ)}, {S(sHG)}
          s_and_b32 {S(sT)}, {S(sT)}, 3
          s_lshl_b32 {S(sT+1)}, {S(sTG)}, 2
          s_add_u32 {S(sT)}, {S(sT)}, {S(sT+1)}
          s_mul_i32 {S(sT)}, {S(sT)}, {16*1280}
          s_mul_i32 {S(sT+1)}, {S(sKQ)}, 20480""")
    def xloop(n):
        lp = a.label("xloop")
        a(f"""s_add_u32 {S(sT+2)}, {S(sT)}, {128*n}
              {lp}:
              s_mov_b32 m0, {S(sT+1)}
              s_addk_i32 {S(sT+1)}, 10240
              buffer_load_dwordx4 v64, {S(X,4)}, {S(sT)} offen lds
              s_mov_b32 m0, {S(sT+1)}
              s_addk_i32 {S(sT+1)}, {(1024-10240) & 0xffff}
              buffer_load_dwordx4 v65, {S(X,4)}, {S(sT)} offen lds
              s_addk_i32 {S(sT)}, 128
              s_cmp_lt_u32 {S(sT)}, {S(sT+2)}
              s_cbranch_scc1 {lp}""")
    xloop(4)
    a("s_waitcnt vmcnt(8)")
    tag_from_epoch(); tag_bytes()
    a.c("selection operands: silu(c[row]) at k-slot l&7, zero elsewhere")
    SEL = 34
    for i in range(5): a(f"v_lshlrev_b32 {R(MC+i)}, 16, {R(MC+i)}")
    for i in range(5): a(f"v_mul_f32 v{68+i}, {hex(fbits(-LOG2E))}, {R(MC+i)}")
    for i in range(5): a(f"v_exp_f32 v{68+i}, v{68+i}")
    for i in range(5): a(f"v_add_f32 v{68+i}, 1.0, v{68+i}")
    for i in range(5): a(f"v_rcp_f32 v{68+i}, v{68+i}")
    for i in range(5): a(f"v_mul_f32 v{68+i}, v{68+i}, {R(MC+i)}")
    a("v_and_b32 v67, 1, v1\nv_lshlrev_b32 v67, 4, v67")
    for i in range(5): a(f"v_cvt_pk_bf16_f32 v{68+i}, v{68+i}, 0")
    for i in range(5): a(f"v_lshlrev_b32 v{68+i}, v67, v{68+i}")
    a("v_lshrrev_b32 v66, 1, v66")
    for m in range(4):
        a(f"v_xor_b32 v{74+m}, {m}, v66\nv_subrev_u32 v{74+m}, 1, v{74+m}\nv_ashrrev_i32 v{74+m}, 31, v{74+m}")
    for i in range(5):
        for m in range(4): a(f"v_and_b32 {R(SEL+4*i+m)}, v{74+m}, v{68+i}")
    xloop(6)
    a(f"""s_lshl_b32 {S(sT)}, {S(sKQ)}, 10
          s_mov_b32 {S(sT+1)}, 0
          L_kloop:
          s_add_u32 m0, {S(sT)}, {L_WKV}
          s_add_u32 {S(sT+1)}, {S(sT+1)}, 1
          buffer_load_dwordx4 {R(vK16)}, {S(WKV,4)}, {S(sT)} offen lds
          s_addk_i32 {S(sT)}, 4096
          s_min_u32 {S(sT)}, {S(sT)}, {24*1024}
          s_cmp_lt_u32 {S(sT+1)}, 7
          s_cbranch_scc1 L_kloop
          s_setprio 0
          s_waitcnt vmcnt(7)
          s_branch {L_bx}
          {l}:""")
    a.c("waves 0..3: wq / wk|wv warm-up shares and the small sentinel regions")
    a("s_waitcnt vmcnt(1)")
    tag_from_epoch(); tag_bytes()
    a("v_lshlrev_b32 v64, 7, v1")
    l = if_wave("eq", cfg.wtouch)
    a(f"""s_mul_i32 {S(sT+1)}, {S(sB)}, 3200
          s_bfe_u32 {S(sT+2)}, {S(sB)}, 0x40003
          s_mul_i32 {S(sT+2)}, {S(sT+2)}, {13*128}
          s_mov_b64 exec, 0x1fff
          buffer_load_dword v17, v64, {S(WKV,4)}, {S(sT+2)} offen
          s_mov_b64 exec, 0x1ffffff
          buffer_load_dword v17, v64, {S(WQ,4)}, {S(sT+1)} offen
          s_mov_b64 exec, -1
          {l}:""")
    l = if_wave("eq", 3)
    a(f"""v_mov_b32 v20, -1
          v_mov_b32 v21, -1
          v_mov_b32 v22, -1
          v_mov_b32 v23, -1
          s_lshl_b32 {S(sT)}, {S(sB)}, 10
          s_add_u32 {S(sT+1)}, {S(sT)}, {W_STATS}
          buffer_store_dwordx4 v[20:23], {R(vK16)}, {S(WS,4)}, {S(sT+1)} offen sc1""")
    if_s(sB, "lt", (W_PF - W_CAND)//1024, l)
    a(f"""s_add_u32 {S(sT+1)}, {S(sT)}, {W_CAND}
          buffer_store_dwordx4 v[20:23], {R(vK16)}, {S(WS,4)}, {S(sT+1)} offen sc1
          {l}:""")
    if cfg.h1pre:
        if_s(sW, "ge", 1, L_bx)
        a.c("waves 1..3: gather the shift / scale partials, two column quads per lane")
        a(f"""s_sub_u32 {S(sT)}, {S(sW)}, 1
              s_lshl_b32 {S(sT)}, {S(sT)}, 10
              v_add_u32 v96, {S(sT)}, {R(vK16)}
              v_add_u32 v97, 3072, v96
              v_min_u32 v97, 5104, v97
              v_cmp_lt_u32 vcc, 2559, v96
              s_mov_b32 {S(sT+4)}, {W_MODP}
              s_mov_b32 {S(sT+5)}, {W_MODP+15360}
              s_mov_b32 {S(sT+6)}, {W_MODP+2*15360}
              s_mov_b32 {S(sT+7)}, {W_MODP+3*15360}
              v_cndmask_b32 v98, 0, 1.0, vcc
              s_sleep {cfg.sl1}""")
        stamp("poll0")
        sp = spin_begin()
        if cfg.sl1r: a(f"s_sleep {cfg.sl1r}")
        for r in range(2):
            for k in range(4): a(f"buffer_load_dwordx4 {R(64+16*r+4*k,4)}, v{96+r}, {S(WS,4)}, {S(sT+4+k)} offen sc1")
        a("s_waitcnt vmcnt(4)")
        tagcheck(64, 99)
        a(f"s_mov_b64 {S(sT+2,2)}, vcc\ns_waitcnt vmcnt(0)")
        tagcheck(80, 99)
        a(f"s_or_b64 vcc, vcc, {S(sT+2,2)}")
        spin_end(sp)
        sum4_round(64, "v98")
        sum4_round(80, "1.0")
        a(f"""v_add_u32 v96, {L_MODF}, v96
              v_add_u32 v97, {L_MODF}, v97
              ds_write_b128 v96, v[64:67]
              ds_write_b128 v97, v[80:83]""")
    a(f"{L_bx}:")
    a.vm = []
    stamp("pre_bx")
    a.barrier()
    stamp("BX")

    def wq_dma(i0, i1):
        for i in range(i0, i1):
            dst = L_WQ1 + 8192*i if i < 5 else L_WQ2 + 8192*(i-5)
            a(f"s_add_u32 m0, {S(sM0)}, {dst}\ns_add_u32 {S(sT+9)}, {S(sWOFF)}, {256*1280*(i//5)}")
            a(f"buffer_load_dwordx4 {R(WOA+i%5)}, {S(WQ,4)}, {S(sT+9)} offen {cfg.qsc} lds")
    XN, ONE, SS, PH = 64, 144, 148, 216
    fr = [(i, g) for g in range(5) for i in range(2)]
    xn = lambda i, g: XN + 40*i + 8*g
    xr = lambda i, g: xn(i, g) + 4
    def xread(k):
        i, g = fr[k]
        for u in range(2):
            a.lds(f"ds_read_b64 {R(xr(i,g)+2*u,2)}, {R(aX+u)} offset:{L_XS + 20480*i + 2048*g}", ("xr", k))
    def unpack(i):
        for g in range(5):
            for m in range(4):
                a(f"v_lshlrev_b32 {R(xn(i,g)+2*m)}, 16, {R(xr(i,g)+m)}\nv_and_b32 {R(xn(i,g)+2*m+1)}, 0xffff0000, {R(xr(i,g)+m)}")
    for k in range(7): xread(k)
    for j in range(4): a(f"v_mov_b32 {R(ONE+j)}, 0x3f803f80")
    wq_dma(0, 2)
    for k, (i, g) in enumerate(fr):
        a.wlg(("xr", k))
        if k + 7 < 10: xread(k + 7)
        a(f"v_mfma_f32_16x16x32_bf16 {R(SS+8*i,4)}, {R(ONE,4)}, {R(xr(i,g),4)}, {'0' if g == 0 else R(SS+8*i,4)}")
        a(f"v_mfma_f32_16x16x32_bf16 {R(SS+8*i+4,4)}, {R(xr(i,g),4)}, {R(xr(i,g),4)}, {'0' if g == 0 else R(SS+8*i+4,4)}")
    def h1loads():
        for k in range(4): a(f"buffer_load_dwordx4 {R(PH+4*k,4)}, {R(aH1)}, {S(WS,4)}, {S(sT+4+k)} offen sc1")
    a(f"""s_mov_b32 {S(sT+4)}, {W_MODP}
          s_mov_b32 {S(sT+5)}, {W_MODP+15360}
          s_mov_b32 {S(sT+6)}, {W_MODP+2*15360}
          s_mov_b32 {S(sT+7)}, {W_MODP+3*15360}
          s_nop 3""")
    if not cfg.h1pre:
        a("s_mov_b32 exec_hi, 0xff")
        h1loads()
        a("s_mov_b32 exec_hi, -1")
    a.c("diagonal of X^T X sits in lane kg == token>>2, register token&3")
    a(f"""s_mov_b32 {S(sT)}, 0xaaaaaaaa
          s_mov_b32 {S(sT+1)}, 0xaaaaaaaa
          s_mov_b32 {S(sT+2)}, 0xcccccccc
          s_mov_b32 {S(sT+3)}, 0xcccccccc""")
    for i in range(2):
        s1 = SS + 8*i
        a(f"""v_cndmask_b32 {R(s1+4)}, {R(s1+4)}, {R(s1+5)}, {S(sT,2)}
              v_cndmask_b32 {R(s1+6)}, {R(s1+6)}, {R(s1+7)}, {S(sT,2)}
              v_cndmask_b32 {R(s1+1)}, {R(s1+4)}, {R(s1+6)}, {S(sT+2,2)}""")
    a(f"""s_mov_b32 exec_lo, 0x00f0000f
          s_mov_b32 exec_hi, 0xf0000f00
          ds_write_b64 {R(aST+1)}, {R(SS,2)}
          ds_write_b64 {R(aST+1)}, {R(SS+8,2)} offset:512
          s_mov_b64 exec, -1""")
    if cfg.h1pre:
        wq_dma(2, 5)
        l = if_wave("lt", 4)
        unpack(0)
        a(f"{l}:\ns_waitcnt vmcnt(5)")
    else:
        unpack(0)
        wq_dma(2, 5)
        unpack(1)
        a("s_mov_b32 exec_hi, 0xff\ns_waitcnt vmcnt(3)")
        stamp("h1arr")
        tagcheck(PH, 232)
        a(f"s_cbranch_vccnz L_h1retry\nL_h1ok:\ns_cmp_ge_u32 {S(sW)}, 4\ns_cselect_b32 {S(sT)}, 1.0, 0")
        sum4_round(PH, S(sT))
        a(f"v_add_u32 v232, {L_MODF}, {R(aH1)}\nds_write_b128 v232, {R(PH,4)}\ns_mov_b32 exec_hi, -1")
    a.barrier()
    stamp("B1")

    MV, KVA = 176, 160
    KW = [16, 20, 24, 34, 38, 42, 46, 50, 144, 12]
    def stats(i, p, q):
        a(f"""v_pk_add_f32 {R(p,2)}, {R(p,2)}, {R(p+2,2)}
              v_pk_add_f32 {R(q,2)}, {R(q,2)}, {R(q+2,2)}
              v_pk_add_f32 {R(p,2)}, {R(p,2)}, {R(q,2)}
              v_mul_f32 {R(p)}, {hex(fbits(1/640))}, {R(p)}
              v_mul_f32 {R(p+1)}, {hex(fbits(1/640))}, {R(p+1)}
              v_fma_f32 {R(p+1)}, -{R(p)}, {R(p)}, {R(p+1)}
              v_max_f32 {R(p+1)}, 0, {R(p+1)}
              v_add_f32 {R(p+1)}, {hex(fbits(1e-5))}, {R(p+1)}
              v_rsq_f32 {R(p+2)}, {R(p+1)}
              s_nop 0
              v_mul_f32 {R(p)}, {R(p)}, {R(p+2)}""")
        for m in range(20):
            a(f"v_pk_fma_f32 {R(XN+40*i+2*m,2)}, {R(XN+40*i+2*m,2)}, {R(p+2,2)}, {R(p,2)} op_sel_hi:[1,0,0] neg_lo:[0,0,1] neg_hi:[0,0,1]")
    def st_read(i, p, q):
        a.lds(f"ds_read_b128 {R(p,4)}, {R(aST)} offset:{512*i}", ("st", i))
        a.lds(f"ds_read_b128 {R(q,4)}, {R(aST)} offset:{512*i+16}", ("st", i))
    def modread(g):
        for j, off in enumerate((2560, 2592, 0, 32)):
            a.lds(f"ds_read_b128 {R(MV+16*g+4*j,4)}, {R(aMOD)} offset:{off + 512*g}", ("m", g))
    def kvwread(g):
        for j in range(2):
            for u in range(2):
                a.lds(f"ds_read_b64_tr_b16 {R(KW[2*g+j]+2*u,2)}, {R(aKVW)} offset:{5120*g + 320*u + 32*j}", ("kw", g))
    def hfrag(i, g):
        for j in range(4):
            a(f"v_pk_fma_f32 {R(xn(i,g)+2*j,2)}, {R(xn(i,g)+2*j,2)}, {R(MV+16*g+2*j,2)}, {R(MV+16*g+8+2*j,2)}")
        for j in range(4):
            a(f"v_cvt_pk_bf16_f32 {R(xn(i,g)+j)}, {R(xn(i,g)+2*j)}, {R(xn(i,g)+2*j+1)}")
    L_p1y = a.label("p1young"); L_p1v = a.label("p1v"); L_p1w = a.label("p1w"); L_p1j = a.label("p1join")
    if_s(sW, "lt", 4, L_p1y)
    a(f"v_mov_b32 v156, {R(aST)}")
    st_read(0, 148, 152)
    modread(0); modread(1); kvwread(0)
    wq_dma(5, 7)
    a.wlg(("st", 0))
    stats(0, 148, 152)
    lg_save = list(a.lg)
    if_s(sHG, "lt", 4, L_p1v)
    for isv in (0, 1):
        if isv: a(f"s_branch {L_p1w}\n{L_p1v}:")
        a.lg = list(lg_save)
        def kvm(g):
            a.wlg(("kw", g))
            for j in range(2):
                ops = (R(xn(0,g),4), R(KW[2*g+j],4)) if isv else (R(KW[2*g+j],4), R(xn(0,g),4))
                a(f"v_mfma_f32_16x16x32_bf16 {R(KVA+4*j,4)}, {ops[0]}, {ops[1]}, {'0' if g == 0 else R(KVA+4*j,4)}")
        for g in range(5):
            a.wlg(("m", g))
            if g + 2 < 5: modread(g + 2)
            hfrag(0, g)
            if g > 0: kvm(g - 1)
            if g + 1 < 5: kvwread(g + 1)
        a("s_nop 0")
        kvm(4)
    a(f"""{L_p1w}:
          s_lshl_b32 {S(sT)}, {S(sKQ)}, 11
          s_add_u32 {S(sT)}, {S(sT)}, {L_KVP}
          v_add_u32 v16, {S(sT)}, {R(vK16)}
          v_add_u32 v17, {L_KVP}, {R(vK16)}""")
    l = if_wave("lt", 3)
    a(f"s_nop 3\nds_write_b128 v16, {R(KVA,4)}\nds_write_b128 v16, {R(KVA+4,4)} offset:1024\n{l}:\ns_waitcnt vmcnt(2)")
    a.barrier()
    stamp("B3")
    l = if_wave("eq", 3)
    KP = [20, 24, 34, 38, 42, 46]
    for k in range(6): a(f"ds_read_b128 {R(KP[k],4)}, v17 offset:{1024*k}")
    a(f"""s_bfe_u32 {S(sT)}, {S(sHG)}, 0x10001
          s_lshl_b32 {S(sT+1)}, {S(sTG)}, 1
          s_add_u32 {S(sT+2)}, {S(sT+1)}, {S(sT)}
          s_mul_i32 {S(sT+2)}, {S(sT+2)}, {KVT}
          s_add_u32 {S(sT+2)}, {S(sT+2)}, {W_KV}
          s_and_b32 {S(sT+3)}, {S(sHG)}, 1
          v_lshrrev_b32 v144, 5, v1
          v_bfe_u32 v145, v1, 4, 1
          v_mov_b32 v146, {OOB}""")
    lv = a.label("vst"); lk = a.label("kvst")
    a(f"""s_cmp_lt_u32 {S(sHG)}, 4
          s_cbranch_scc0 {lv}
          s_mov_b32 {S(sT+4)}, {hex(fbits(KSCALE))}
          s_lshl_b32 {S(sT+5)}, {S(sT+3)}, 8
          s_add_u32 {S(sT+2)}, {S(sT+2)}, {S(sT+5)}
          s_mul_i32 {S(sT+1)}, {S(sT+1)}, {KVT}
          s_lshl_b32 {S(sT+5)}, {S(sHG)}, 7
          s_add_u32 {S(sT+1)}, {S(sT+1)}, {S(sT+5)}
          s_add_u32 {S(sT+1)}, {S(sT+1)}, {W_KV+2560}
          v_lshlrev_b32 v144, 9, v144
          v_lshl_add_u32 v144, v2, 4, v144
          v_lshl_add_u32 v144, v145, 3, v144
          v_lshlrev_b32 v145, 3, v2
          s_mov_b64 vcc, 0xffff
          s_mov_b64 {S(sT+6,2)}, 0
          s_branch {lk}
          {lv}:
          s_mov_b32 {S(sT+4)}, 1.0
          s_mul_i32 {S(sT+5)}, {S(sT+3)}, 768
          s_add_u32 {S(sT+2)}, {S(sT+2)}, {S(sT+5)}
          s_add_u32 {S(sT+2)}, {S(sT+2)}, 1024
          s_mov_b32 {S(sT+1)}, {S(sT+2)}
          v_mul_u32_u24 v144, 320, v144
          v_lshl_add_u32 v144, v2, 4, v144
          v_lshl_add_u32 v144, v145, 3, v144
          v_add_u32 v145, 256, v144
          s_mov_b32 vcc_lo, 0x000f000f
          s_mov_b32 vcc_hi, 0x001f001f
          s_mov_b32 {S(sT+6)}, 0
          s_mov_b32 {S(sT+7)}, 0x00100010
          {lk}:
          v_mov_b32 v147, 0x3f803f80
          v_cndmask_b32 v145, v146, v145, vcc
          s_waitcnt lgkmcnt(0)""")
    for k in range(6):
        for m in range(2): a(f"v_pk_add_f32 {R(KVA+4*(k&1)+2*m,2)}, {R(KVA+4*(k&1)+2*m,2)}, {R(KP[k]+2*m,2)}")
    for j in range(8): a(f"v_mul_f32 {R(KVA+j)}, {S(sT+4)}, {R(KVA+j)}")
    for j in range(4): a(f"v_cvt_pk_bf16_f32 v{148+j}, {R(KVA+2*j)}, {R(KVA+2*j+1)}")
    a(f"""v_cndmask_b32 v150, v150, v147, {S(sT+6,2)}
          v_cndmask_b32 v151, v151, v147, {S(sT+6,2)}
          buffer_store_dwordx2 v[148:149], v144, {S(WS,4)}, {S(sT+2)} offen sc1
          buffer_store_dwordx2 v[150:151], v145, {S(WS,4)}, {S(sT+1)} offen sc1
          {l}:""")
    stamp("kv_st")
    a(f"v_mov_b32 {R(aST)}, v156")
    wq_dma(7, 10)
    a(f"s_branch {L_p1j}\n{L_p1y}:")
    a.lg = []
    wq_dma(5, 8)
    st_read(0, 148, 152)
    for g in range(3): modread(g)
    if cfg.h1pre: unpack(0)
    a.wlg(("m", 1))
    for g in range(3, 5): modread(g)
    wq_dma(8, 10)
    a("s_waitcnt vmcnt(5)")
    a.barrier()
    stats(0, 148, 152)
    for g in range(5): hfrag(0, g)
    a(f"{L_p1j}:")
    st_read(1, 152, 156)
    if cfg.h1pre: unpack(1)
    wq_dma(10, 13)
    a.lg0()
    stats(1, 152, 156)
    for g in range(5): hfrag(1, g)
    MWL = [XN + 8*k + 4 for k in range(5)]
    l = if_wave("ge", 4)
    if_s(sB, "ge", 96, l)
    a(f"""v_lshrrev_b32 v16, 3, v1
          v_mul_u32_u24 v16, 7680, v16
          v_and_b32 v17, 7, v1
          v_lshl_add_u32 v16, v17, 4, v16""")
    for i in range(5):
        a(f"buffer_load_dwordx4 {R(MWL[i],4)}, v16, {S(WM,4)}, {S(sMSO)} offen {cfg.msc}")
        if i < 4: a(f"s_add_u32 {S(sMSO)}, {S(sMSO)}, {8*7680}")
    a(f"{l}:")
    stamp("h")

    QACC, WRG, NRING = 176, 216, 7
    def gemm_q(g0, g1, areg, hook=None):
        fq = [(g, j) for g in range(g0, g1) for j in range(5)]
        def rd(n):
            g, j = fq[n]
            for u in range(2):
                a.lds(f"ds_read_b64_tr_b16 {R(WRG+4*(n%NRING)+2*u,2)}, {R(areg)} offset:{20480*(g-g0) + 1280*u + 8*j}", ("w", n))
        for n in range(NRING - 1): rd(n)
        for n, (g, j) in enumerate(fq):
            a.wlg(("w", n))
            for i in range(2):
                acc = QACC + 20*i + 4*j
                a(f"v_mfma_f32_16x16x32_bf16 {R(acc,4)}, {R(WRG+4*(n%NRING),4)}, {R(xn(i,g),4)}, {'0' if g == 0 else R(acc,4)}")
            if n + NRING - 1 < len(fq): rd(n + NRING - 1)
            if hook and n == hook[0]: hook[1]()
    l = if_wave("eq", 3)
    a(f"""s_waitcnt vmcnt(6)
          v_mov_b32 v16, {S(sTAG)}
          s_lshl_b32 {S(sT)}, {S(sB)}, 5
          s_add_u32 {S(sT)}, {S(sT)}, {W_KVF}
          v_lshlrev_b32 v17, 24, v1
          buffer_store_dword v16, v17, {S(WS,4)}, {S(sT)} offen sc1
          {l}:""")
    stamp("flag")
    gemm_q(0, 2, aWQ1)
    l = if_wave("ge", 4); lj = a.label("j")
    if_s(sB, "ge", 96, l)
    a(f"s_waitcnt vmcnt(5)\ns_branch {lj}\n{l}:\ns_waitcnt vmcnt(0)\n{lj}:")
    a.barrier()
    stamp("B3b")
    def h2loads():
        for k in range(4):
            a(f"buffer_load_dword v{24+k}, v19, {S(WS,4)}, {S(sT+2+k//2)} offen offset:{2048*(k&1)} sc1")
    def h2check():
        a("s_waitcnt vmcnt(0)")
        for k in range(4): a(f"v_xor_b32 v{24+k}, {S(sTAG)}, v{24+k}")
        a("v_or3_b32 v24, v24, v25, v26\nv_or_b32 v24, v24, v27\nv_cmp_ne_u32 vcc, 0, v24")
    def h2hook():
        l = if_wave("eq", 0)
        h2loads()
        a(f"{l}:")
    a(f"v_lshlrev_b32 v19, 5, v1\ns_mov_b32 {S(sT+2)}, {W_KVF}\ns_mov_b32 {S(sT+3)}, {W_KVF+4096}")
    gemm_q(2, 5, aWQ2, (cfg.h2at, h2hook))
    a(f"""s_mul_i32 {S(sT)}, {S(sTH)}, 30720
          s_add_u32 {S(sT)}, {S(sT)}, {L_QP}
          v_add_u32 v16, {S(sT)}, {R(vK16)}
          s_and_b32 {S(sT)}, {S(sKQ)}, 1
          s_lshl_b32 {S(sT+1)}, {S(sTH)}, 1
          s_add_u32 {S(sT)}, {S(sT)}, {S(sT+1)}
          s_add_u32 {S(sT)}, {S(sT)}, {S(sHG)}
          s_and_b32 {S(sT)}, {S(sT)}, 3
          s_mul_i32 {S(sT)}, {S(sT)}, {16*QSTR}
          s_add_u32 {S(sT)}, {S(sT)}, {L_QS}
          v_mul_u32_u24 v17, {QSTR}, v2
          v_mul_u32_u24 v18, 48, v3
          v_add3_u32 v17, v17, v18, {S(sT)}""")
    D = cfg.depth
    O_, SB, QA, QB, FR = 64, [192, 224], 8, 24, 28
    KA = [128 + 4*i for i in range(D)]
    VV = [140 + 8*i for i in range(D)]
    NKB = D // 2 + 1
    KB = [164 + 2*i for i in range(NKB)]
    sld = cfg.sld
    def ldk(t): a.vmem(f"buffer_load_dwordx4 {R(KA[t%D],4)}, {R(vK16)}, {S(WS,4)}, {S(sKT+t)} offen {sld}", ("k", t))
    def ldb(p): a.vmem(f"buffer_load_dwordx2 {R(KB[p%NKB],2)}, {R(vK8)}, {S(WS,4)}, {S(sKT+2*p)} offen offset:2560 {sld}", ("b", p))
    def ldv(t):
        for i in range(2): a.vmem(f"buffer_load_dwordx4 {R(VV[t%D]+4*i,4)}, {R(vV)}, {S(WS,4)}, {S(sKT+t)} offen offset:{1024+768*i} {sld}", ("v", t))
    owner = lambda i, j: i + (2 if j >= 2 else 0)
    L_q = a.label("qdone")
    for kq in range(4):
        nxt = if_s(sKQ, "eq", kq) if kq < 3 else None
        for i in range(2):
            for j in range(5):
                if owner(i, j) != kq:
                    a(f"ds_write_b128 v16, {R(QACC+20*i+4*j,4)} offset:{(3*(5*i+j) + ((kq-owner(i,j)-1)&3))*1024}")
        if kq == 0:
            l = if_wave("eq", 0)
            h2check()
            a(f"s_cbranch_vccnz L_h2retry\nL_h2ok:\n{l}:")
        a.barrier()
        if kq == 0: stamp("B4")
        i = kq & 1; js = (0, 1) if kq < 2 else (2, 3, 4)
        tmp = [216 + 4*k for k in range(7)] + [64, 72]
        for n, j in enumerate(js):
            for sl in range(3): a(f"ds_read_b128 {R(tmp[3*n+sl],4)}, v16 offset:{(3*(5*i+j)+sl)*1024}")
        a.vm = []
        ldb(0); ldk(0); ldv(0)
        for n, j in enumerate(js):
            a(f"s_waitcnt lgkmcnt({3*(len(js)-1-n)})")
            acc = QACC + 20*i + 4*j
            for sl in range(3):
                for m in range(2): a(f"v_pk_add_f32 {R(acc+2*m,2)}, {R(acc+2*m,2)}, {R(tmp[3*n+sl]+2*m,2)}")
            for m in range(2): a(f"v_cvt_pk_bf16_f32 v{20+2*n+m}, {R(acc+2*m)}, {R(acc+2*m+1)}")
        a(f"ds_write_b128 v17, v[20:23] offset:{0 if kq < 2 else 16}")
        if kq >= 2: a("ds_write_b64 v17, v[24:25] offset:32")
        if nxt: a(f"s_branch {L_q}\n{nxt}:")
    a(f"{L_q}:")
    l = if_wave("ge", 4)
    if_s(sB, "ge", 96, l)
    a(f"s_waitcnt vmcnt({len(a.vm)})")
    for i in range(5):
        a(f"v_mfma_f32_16x16x32_bf16 v[244:247], {R(SEL+4*i,4)}, {R(MWL[i],4)}, {'0' if i == 0 else 'v[244:247]'}")
    a(f"""v_and_b32 v16, 7, v1
          v_lshlrev_b32 v16, 5, v16
          v_and_b32 v18, 1, v3
          v_lshl_add_u32 v16, v18, 4, v16
          v_lshrrev_b32 v18, 5, v1
          v_lshl_add_u32 v16, v18, 8, v16
          s_lshl_b32 {S(sT)}, {S(sKQ)}, 9
          s_add_u32 {S(sT)}, {S(sT)}, {L_LT}
          v_add_u32 v16, {S(sT)}, v16
          s_mov_b32 exec_lo, 0x00ff00ff
          s_mov_b32 exec_hi, 0xff00ff00
          ds_write_b128 v16, v[244:247]
          s_mov_b64 exec, -1
          {l}:""")
    a.barrier()
    stamp("B5")

    for p in range(2): a.lds(f"ds_read_b64 {R(QB+2*p,2)}, {R(QAD+4+p)} offset:32")
    for i in range(4): a.lds(f"ds_read_b128 {R(QA+4*i,4)}, {R(QAD+i)}")
    def first_loads():
        for t in range(1, D): ldk(t); ldv(t)
        for p in range(1, NKB): ldb(p)
    vm_a = list(a.vm)
    l = if_wave("lt", 4)
    first_loads()
    a(f"{l}:")
    if cfg.prio: a("s_setprio 3")
    a("v_mov_b32 v180, 0\nv_mov_b32 v181, 0")
    for i in range(4): a(f"v_mov_b32 v{176+i}, -1")
    a.barrier()
    l = if_wave("ge", 4)
    a.vm = vm_a
    first_loads()
    if 'X' not in cfg.xp and not cfg.tch_at:
        a.c("L2 / LLC warm-up for weights read later; every wave holds two tiles of work that need no further loads")
        a(f"""s_lshl_b32 {S(sT)}, {S(sB)}, 2
              s_add_u32 {S(sT)}, {S(sT)}, {S(sKQ)}
              s_lshr_b32 {S(sT+1)}, {S(sT)}, 1
              s_mul_i32 {S(sT+1)}, {S(sT+1)}, {135*32}
              s_andn2_b32 {S(sT+1)}, {S(sT+1)}, 127
              s_mul_i32 {S(sT+2)}, {S(sT)}, {135*16}
              s_andn2_b32 {S(sT+2)}, {S(sT+2)}, 127
              s_mul_i32 {S(sT+3)}, {S(sT)}, 800
              s_andn2_b32 {S(sT+3)}, {S(sT+3)}, 127
              v_lshlrev_b32 v186, 7, v1
              s_mov_b64 exec, 0x7f
              buffer_load_dword v185, v186, {S(WO,4)}, {S(sT+3)} offen {cfg.tsc}
              s_mov_b32 exec_lo, -1
              s_mov_b32 exec_hi, 3
              buffer_load_dword v185, v186, {S(GU,4)}, {S(sT+1)} offen {cfg.tsc}
              s_mov_b64 exec, 0x1ffff
              buffer_load_dword v185, v186, {S(DN,4)}, {S(sT+2)} offen {cfg.tsc}
              s_mov_b64 exec, -1
              s_waitcnt vmcnt(3)""")
    a(f"{l}:")
    l = if_wave("eq", 4)
    if_s(sB, "ge", 96, l)
    a(f"""v_lshlrev_b32 v232, 4, v2
          v_lshl_add_u32 v233, v3, 9, v232
          v_add_u32 v233, {L_LT}, v233
          ds_read_b128 v[224:227], v233
          ds_read_b128 v[228:231], v233 offset:256
          v_lshl_add_u32 v232, v3, 2, v232
          v_lshlrev_b32 v234, 3, v3
          v_lshrrev_b32 v234, v234, {S(sTAG)}
          s_movk_i32 {S(sT)}, 0xff
          s_waitcnt lgkmcnt(0)
          v_pk_add_f32 v[224:225], v[224:225], v[228:229]
          v_pk_add_f32 v[226:227], v[226:227], v[230:231]
          s_nop 1
          v_permlane32_swap_b32 v224, v226
          v_permlane32_swap_b32 v225, v227
          v_add_f32 v224, v224, v226
          v_add_f32 v225, v225, v227
          s_nop 1
          v_permlane16_swap_b32 v224, v225
          v_add_f32 v224, v224, v225
          v_bfi_b32 v187, {S(sT)}, v234, v224
          buffer_store_dword v187, v232, {S(WS,4)}, {S(sMOUT)} offen sc1
          {l}:""")
    initial = set(a.vm) if 'X' not in cfg.xp and not cfg.tch_at else set()
    def wv(tags):
        live = [x for x in tags if x in a.vm]
        if not live: return
        lab = if_wave("lt", 4) if all(x in initial for x in live) else None
        a.wvm(tags)
        if lab: a(f"{lab}:")
    wv([("b", 0), ("k", 0)])
    a(f"v_mfma_f32_32x32x4_2b_bf16 {R(SB[0],32)}, {R(KB[0],2)}, {R(QB,2)}, 0 cbsz:1 abid:0")
    for i in range(2): a(f"v_mfma_f32_32x32x4_2b_bf16 {R(O_+32*i,32)}, v[180:181], v[180:181], 0")
    a(f"""s_nop 15
          v_mfma_f32_32x32x16_bf16 {R(SB[0],16)}, {R(KA[0],4)}, {R(QA,4)}, {R(SB[0],16)}
          v_mfma_f32_32x32x16_bf16 {R(SB[0]+16,16)}, {R(KA[0],4)}, {R(QA+4,4)}, {R(SB[0]+16,16)}
          s_nop 10""")
    stamp("attn0")
    units = [(t, p) for t in range(16) for p in range(2)]
    NU = len(units)
    PM, vWR, vPF = 176, WOA, WOA + 2
    def pf_load(): return f"buffer_load_dword {R(vPF)}, {R(vPF+1)}, {S(WS,4)}, {S(sT+8)} offen sc1"
    def pm_loads():
        for k in range(4): a(f"buffer_load_dwordx4 {R(PM+4*k,4)}, {R(vK16)}, {S(WS,4)}, {S(sT+4+k)} offen sc1")
    def background(u):
        if u == cfg.p_at and 'P' not in cfg.xp:
            a.c("sentinels over the o lines this wave will write")
            a.vmem(f"buffer_store_dwordx4 v[176:179], {R(vOS)}, {S(WS,4)}, {S(sOST)} offen sc1", "pois")
            a.vmem(f"buffer_store_dword v176, {R(vOS+1)}, {S(WS,4)}, {S(sOST)} offen sc1", "pois")
        if u in cfg.wo_at and 'W' not in cfg.xp:
            i = cfg.wo_at.index(u)
            a(f"s_add_u32 m0, {S(sM0)}, {L_WO + 8192*i}\ns_add_u32 {S(sT+9)}, {S(sWOFF)}, {256*1280*(i//5)}")
            a.vmem(f"buffer_load_dwordx4 {R(WOA+i%5)}, {S(WO,4)}, {S(sT+9)} offen {cfg.wsc} lds", "wo")
        if u == cfg.p_at + 6:
            a.c("flag: sentinels in place, plus this die's id; then keep those lines resident in L2")
            a.wvm("pois")
            a(f"""s_lshl_b32 {S(sT+8)}, {S(sTG)}, 8
                  s_add_u32 {S(sT+8)}, {S(sT+8)}, {W_PF}
                  s_lshl_b32 {S(sT)}, {S(sHG)}, 5
                  s_lshl_b32 {S(sT+1)}, {S(sW)}, 2
                  s_add_u32 {S(sT)}, {S(sT)}, {S(sT+1)}
                  s_add_u32 {S(sT)}, {S(sT)}, {S(sT+8)}
                  v_mov_b32 v180, {S(sPFV)}
                  s_mov_b64 exec, 1""")
            a.vmem(f"buffer_store_dword v180, {R(vK16)}, {S(WS,4)}, {S(sT)} offen sc1", "pf")
            a("s_mov_b64 exec, -1")
        if u == cfg.t_at and 'T' not in cfg.xp:
            a.vmem(f"buffer_load_dword v181, {R(vOS)}, {S(WS,4)}, {S(sOST)} offen sc1", "touch")
            a.vmem(f"buffer_load_dword v182, {R(vOS+1)}, {S(WS,4)}, {S(sOST)} offen sc1", "touch")
        if u == cfg.t_at + 1 and 'T' not in cfg.xp:
            a(f"""s_lshl_b32 {S(sT)}, {S(sTG)}, 13
                  s_lshl_b32 {S(sT+1)}, {S(sHG)}, 10
                  s_add_u32 {S(sT)}, {S(sT)}, {S(sT+1)}
                  s_add_u32 {S(sT)}, {S(sT)}, {W_STATS}""")
            a.vmem(f"buffer_load_dword v183, {R(vK16)}, {S(WS,4)}, {S(sT)} offen sc1", "touch")
        if u == 15:
            l = if_s(sB, "eq", 0)
            if_s(sW, "eq", 0, l)
            a(f"""v_mov_b32 v184, {S(sTAG)}
                  s_mov_b64 exec, 1
                  buffer_store_dword v184, {R(vK16)}, {S(WS,4)}, 0 offen sc1
                  s_mov_b64 exec, -1
                  {l}:""")
        if u == cfg.late_at:
            lh, lj = a.label("bgh"), a.label("bgj")
            if_s(sW, "ge", 4, lh)
            for k in range(5): a(f"buffer_load_dwordx2 {R(PM+2*k,2)}, {R(vXO)}, {S(X,4)}, {S(sXO)} offen offset:{8*k}")
            a(f"""s_branch {lj}
                  {lh}:
                  s_mul_i32 {S(sT)}, {S(sKQ)}, 2560
                  s_lshl_b32 {S(sT+1)}, {S(sWOFF)}, 1
                  s_add_u32 {S(sT)}, {S(sT)}, {S(sT+1)}
                  s_add_u32 {S(sT+4)}, {S(sT)}, {W_MODP + 5120}
                  s_add_u32 {S(sT+5)}, {S(sT+4)}, 15360
                  s_add_u32 {S(sT+6)}, {S(sT+5)}, 15360
                  s_add_u32 {S(sT+7)}, {S(sT+6)}, 15360
                  s_mov_b64 exec, 0xfffff
                  buffer_load_dwordx2 {R(vWR,2)}, {R(vK8)}, {S(WR,4)}, {S(sWOFF)} offen""")
            pm_loads()
            a(f"s_mov_b64 exec, -1\n{lj}:")
            a.vm += ["late"] * 5
        if u == cfg.late_at + 1:
            a(f"v_lshlrev_b32 {R(vPF+1)}, 2, v1")
            a.vmem(pf_load(), "pfl")
    def f_slot(u):
        for k in range(len(cfg.tch_at)):
            if cfg.tch_at[k] != u or 'X' in cfg.xp: continue
            srd_, sh, mul, add, n = [(WO, 0, 400, 0, 4), (GU, 1, 2160, 0, 9), (GU, 1, 2160, 1152, 9), (DN, 0, 1080, 0, 9)][k]
            if k == 0: a("v_lshlrev_b32 v186, 7, v1")
            a(f"""s_lshl_b32 {S(sT)}, {S(sB)}, 3
                  s_add_u32 {S(sT)}, {S(sT)}, {S(sW)}
                  s_lshr_b32 {S(sT)}, {S(sT)}, {sh}
                  s_mul_i32 {S(sT)}, {S(sT)}, {mul}
                  s_andn2_b32 {S(sT)}, {S(sT)}, 127
                  s_mov_b64 exec, {(1 << n) - 1}""")
            a.vmem(f"buffer_load_dword v185, v186, {S(srd_,4)}, {S(sT)} offen offset:{add}", "tch")
            a("s_mov_b64 exec, -1")
        if u not in cfg.f_at or 'F' in cfg.xp: return
        k = cfg.f_at.index(u)
        a(f"s_mov_b32 exec_lo, {S(sEXA)}\ns_mov_b32 exec_hi, {S(sEXA)}")
        a.vmem(f"buffer_load_dwordx4 {R(FR+4*k,4)}, {R(vF)}, {S(F,4)}, {S(sF0)} offen {cfg.fsc}", "f")
        a(f"s_mov_b64 exec, -1\ns_add_u32 {S(sF0)}, {S(sF0)}, {S(sFSTEP)}\ns_min_u32 {S(sF0)}, {S(sF0)}, {S(sFMAX)}")
    ready = []
    def drain(u):
        if u < cfg.quiet: return
        ready.sort(key=lambda x: x[0])
        for need, fn, arg in ready[:2]:
            assert need > u
            fn(arg)
        del ready[:2]
    a.c("main loop: unnormalised exponentials, range-checked afterwards")
    for u, (t, p) in enumerate(units):
        cur = SB[u & 1]; nxt = SB[(u + 1) & 1]
        last = u == NU - 1
        tn, pn = units[min(u + 1, NU - 1)]
        tp, pp = units[u - 1]
        def e(x, y):
            for i in range(x, y): a(f"v_exp_f32 {R(cur+i)}, {R(cur+i)}")
        def sm(o, av, bv): a(f"v_smfmac_f32_32x32x32_bf16 {R(o,16)}, {R(av,4)}, {R(bv,8)}, {R(IDX)}")
        if cfg.prio and p == 0 and t in cfg.prio: a(f"s_setprio {2 - cfg.prio.index(t)}")
        if cfg.only and u % 2 == 0: stamp(f"u{u}")
        e(0, 2)
        if u > 0: sm(O_ + 32*pp + 16, VV[tp % D] + 4, nxt + 24)
        if p == 0 and t > 0 and t + D - 1 < 16: ready.append((2*(t + D - 1), ldv, t + D - 1))
        drain(u)
        if p == 1 and not last: wv([("k", tn), ("b", tn >> 1)])
        e(2, 5)
        if not last: a(f"v_mfma_f32_32x32x4_2b_bf16 {R(nxt,32)}, {R(KB[(tn>>1)%NKB],2)}, {R(QB+2*pn,2)}, 0 cbsz:1 abid:{tn&1}")
        if p == 1 and t + D < 16: ready.append((2*(t + D) - 1, ldk, t + D))
        if p == 1 and (t & 1) and (t >> 1) + NKB < 8: ready.append((4*((t >> 1) + NKB) - 1, ldb, (t >> 1) + NKB))
        drain(u)
        e(5, 13)
        if p == 0: wv([("v", t)])
        sm(O_ + 32*p, VV[t % D], cur)
        e(13, 18)
        sm(O_ + 32*p, VV[t % D] + 4, cur + 8)
        background(u)
        e(18, 21)
        if not last: a(f"v_mfma_f32_32x32x16_bf16 {R(nxt,16)}, {R(KA[tn%D],4)}, {R(QA+8*pn,4)}, {R(nxt,16)}")
        e(21, 25)
        if not last: a(f"v_mfma_f32_32x32x16_bf16 {R(nxt+16,16)}, {R(KA[tn%D],4)}, {R(QA+8*pn+4,4)}, {R(nxt+16,16)}")
        f_slot(u)
        e(25, 28)
        sm(O_ + 32*p + 16, VV[t % D], cur + 16)
        e(28, 32)
    a(f"s_nop 1\nv_smfmac_f32_32x32x32_bf16 {R(O_+48,16)}, {R(VV[15%D]+4,4)}, {R(SB[1]+24,8)}, {R(IDX)}")
    stamp("attn1")

    a(f"s_and_b32 {S(sT)}, {S(sW)}, 4")
    for i in (1, 2, 3):
        o = O_ + 16*i; p = 192 + 8*i
        a(f"""s_add_u32 {S(sT+1)}, {S(sW)}, {i}
              s_and_b32 {S(sT+1)}, {S(sT+1)}, 3
              s_or_b32 {S(sT+1)}, {S(sT+1)}, {S(sT)}
              s_mul_i32 {S(sT+1)}, {S(sT+1)}, 4608
              s_add_u32 {S(sT+1)}, {S(sT+1)}, {L_PART + 1536*(i-1)}
              v_add_u32 {R(p+6)}, {S(sT+1)}, {R(vK16)}
              v_add_u32 {R(p+7)}, {S(sT+1)}, {R(vK8)}""")
        for j in range(5): a(f"v_cvt_pk_bf16_f32 {R(p+j)}, {R(o+2*j)}, {R(o+2*j+1)}")
        a(f"v_mov_b32 {R(p+5)}, {R(o+10)}\nds_write_b128 {R(p+6)}, {R(p,4)}\nds_write_b64 {R(p+7)}, {R(p+4,2)} offset:1024")
    a(f"""s_mul_i32 {S(sT+1)}, {S(sW)}, 4608
          s_add_u32 {S(sT+1)}, {S(sT+1)}, {L_PART}
          v_add_u32 v192, {S(sT+1)}, {R(vK16)}
          v_add_u32 v193, {S(sT+1)}, {R(vK8)}
          s_movk_i32 {S(sT)}, 0x3f80
          s_mov_b32 {S(sT+1)}, 0x3f800000
          s_setprio 0""")
    a.vm0()
    def pf_check():
        a(f"""v_cmp_ne_u32 {S(sT+2,2)}, {S(sPFV)}, {R(vPF)}
              v_xor_b32 v194, {S(sTAG)}, {R(vPF)}
              v_cmp_lt_u32 vcc, 15, v194""")
    pf_check()
    a(f"""s_cbranch_vccnz L_pfretry
          L_pfok:
          s_cmp_eq_u64 {S(sT+2,2)}, 0
          s_cselect_b32 {S(sFAST)}, {0 if 'S' in cfg.xp else 1}, 0""")
    l = if_wave("lt", 4)
    a.c("waves 0..3: ga / sb / cb / gb of this column slice -> LDS")
    a("v_mov_b32 v136, 0\ns_mov_b64 exec, 0xfffff")
    tagcheck(PM, 128)
    a(f"s_cbranch_vccnz L_pmretry\nL_pmok:\ns_cmp_eq_u32 {S(sKQ)}, 2\ns_cselect_b32 {S(sT+2)}, 1.0, 0")
    sum4_round(PM, S(sT+2))
    a(f"""s_mul_i32 {S(sT+2)}, {S(sKQ)}, 320
          s_add_u32 {S(sT+2)}, {S(sT+2)}, {L_MB}
          v_add_u32 v137, {S(sT+2)}, {R(vK16)}
          ds_write_b128 v137, {R(PM,4)}
          v_lshlrev_b32 v128, 16, {R(vWR)}
          v_and_b32 v129, 0xffff0000, {R(vWR)}
          v_lshlrev_b32 v130, 16, {R(vWR+1)}
          v_and_b32 v131, 0xffff0000, {R(vWR+1)}
          v_pk_mul_f32 v[132:133], {R(PM,2)}, v[128:129]
          v_pk_mul_f32 v[134:135], {R(PM+2,2)}, v[130:131]
          v_add_u32 v138, {L_MB + 1280}, {R(vK16)}
          v_add_f32 v136, v132, v133
          v_add_f32 v139, v134, v135
          v_add_f32 v136, v136, v139""")
    l2 = if_s(sKQ, "eq", 2)
    a(f"ds_write_b128 v138, v[132:135]\n{l2}:\ns_mov_b64 exec, -1\ns_nop 1")
    for rot in (8, 4, 2, 1):
        a(f"v_add_f32_dpp v136, v136, v136 row_ror:{rot} row_mask:0xf bank_mask:0xf\ns_nop 1")
    a(f"""v_readlane_b32 {S(sT+2)}, v136, 16
          s_lshl_b32 {S(sT+3)}, {S(sKQ)}, 2
          s_add_u32 {S(sT+3)}, {S(sT+3)}, {L_MB + 1600}
          v_mov_b32 v137, {S(sT+3)}
          v_add_f32 v136, {S(sT+2)}, v136
          s_mov_b64 exec, 1
          ds_write_b32 v137, v136
          s_mov_b64 exec, -1
          {l}:""")
    for s in range(10): a(f"s_add_u32 {S(sKT+s)}, {S(sOLD)}, {4096*s}")
    a.barrier()
    stamp("B6")
    for i in range(3):
        a.lds(f"ds_read_b128 {R(96+8*i,4)}, v192 offset:{1536*i}", ("p", i))
        a.lds(f"ds_read_b64 {R(100+8*i,2)}, v193 offset:{1536*i+1024}", ("p", i))
    for i in range(3):
        a.wlg(("p", i))
        for j in range(5):
            a(f"v_dot2c_f32_bf16 {R(O_+2*j)}, {S(sT)}, {R(96+8*i+j)}\nv_dot2c_f32_bf16 {R(O_+2*j+1)}, {S(sT+1)}, {R(96+8*i+j)}")
        a(f"v_add_f32 {R(O_+10)}, {R(O_+10)}, {R(101+8*i)}")
    a.c("range check on the softmax denominator; outside it this wave redoes its tile with the true row maximum")
    lo_lim, hi_lim = (2.0**60, 2.0**-60) if cfg.force_slow else (2.0**-40, 2.0**60)
    a(f"""v_cmp_nle_f32 vcc, {hex(fbits(lo_lim))}, {R(O_+10)}
          s_mov_b64 {S(sT+2,2)}, vcc
          v_cmp_nge_f32 vcc, {hex(fbits(hi_lim))}, {R(O_+10)}
          s_or_b64 vcc, vcc, {S(sT+2,2)}
          s_cbranch_vccnz L_slow
          L_slow_done:
          v_rcp_f32 {R(O_+10)}, {R(O_+10)}
          s_nop 0""")
    for j in range(5): a(f"v_pk_mul_f32 {R(O_+2*j,2)}, {R(O_+2*j,2)}, {R(O_+10,2)} op_sel_hi:[1,0]")
    for j in range(5): a(f"v_cvt_pk_bf16_f32 {R(120+j)}, {R(O_+2*j)}, {R(O_+2*j+1)}")
    def pub(lines):
        l1, l2 = a.label("wt"), a.label("pub")
        if_s(sFAST, "eq", 1, l1)
        for x in lines: a(x)
        a(f"s_branch {l2}\n{l1}:")
        for x in lines: a(x + " sc1")
        a(f"{l2}:")
    pub([f"buffer_store_dwordx4 v[120:123], {R(vOS)}, {S(WS,4)}, {S(sOST)} offen",
         f"buffer_store_dword v124, {R(vOS+1)}, {S(WS,4)}, {S(sOST)} offen"])
    stamp("o_stored")

    OF, ACC, X1 = 64, 104, 8
    WB = [192 + 4*i for i in range(16)] + [128 + 4*i for i in range(12)]
    WB = WB[16:] + WB[:16]
    NWF = len(WB)
    def wread(i):
        s, j = divmod(i, 5)
        per, s5 = divmod(s, 5)
        base = L_WO + 25600*per + 8*j
        for u in range(2):
            if s5 in (0, 1, 3): areg, off = AB, {0: 0, 1: 40, 3: 100}[s5]*160 + 1280*u
            else: areg, off = ((A2a, A2b) if s5 == 2 else (A4a, A4b))[u], 0
            a.lds(f"ds_read_b64_tr_b16 {R(WB[i%NWF]+2*u,2)}, {R(areg)} offset:{base+off}", ("wf", i))
    def oload(s): a(f"buffer_load_dwordx4 {R(OF+4*s,4)}, {R(vOL)}, {S(WS,4)}, {S(sKT+s)} offen sc1")
    a(f"""s_mul_i32 {S(sT)}, {S(sKQ)}, 5120
          s_add_u32 {S(sT)}, {S(sT)}, {L_WP}
          v_add_u32 v6, {S(sT)}, {R(vK16)}
          v_mul_u32_u24 v7, 80, v3
          v_add_u32 v7, {L_MB}, v7""")
    retry = []
    def ostep(s):
        a(f"s_waitcnt vmcnt({9-s})")
        poisoncheck(range(OF+4*s, OF+4*s+4), 125)
        lr, lb = a.label("oretry"), a.label("oback")
        a(f"s_cbranch_vccnz {lr}\n{lb}:")
        retry.append((s, lr, lb))
        for j in range(5):
            i = 5*s + j
            a.wlg(("wf", i))
            a(f"v_mfma_f32_16x16x32_bf16 {R(ACC+4*j,4)}, {R(WB[i%NWF],4)}, {R(OF+4*s,4)}, {'0' if s == 0 else R(ACC+4*j,4)}")
        for j in range(5):
            if 5*s + j + NWF < 50: wread(5*s + j + NWF)
    def fimage():
        l = if_s(sB, "lt", 216)
        a(f"""s_mul_i32 {S(sT+6)}, {S(sTH)}, {L_FU - L_FG}
              s_mul_i32 {S(sT+7)}, {S(sKQ)}, 2560
              s_add_u32 {S(sT+6)}, {S(sT+6)}, {S(sT+7)}
              v_lshrrev_b32 v124, 5, v1
              v_lshl_add_u32 v124, v124, 4, v2
              v_lshl_add_u32 v124, v124, 4, {S(sT+6)}
              s_mov_b32 exec_lo, 0xffff
              s_mov_b32 exec_hi, 0xffff""")
        for k in range(5): a(f"ds_write_b128 v124, {R(FR+4*k,4)} offset:{L_FG + 512*k}")
        a(f"s_mov_b64 exec, -1\n{l}:")
    lh = a.label("helper2")
    if_s(sW, "ge", 4, lh)
    for i in range(NWF): wread(i)
    for m in range(10):
        a(f"v_lshlrev_b32 {R(X1+2*m)}, 16, {R(PM+m)}\nv_and_b32 {R(X1+2*m+1)}, 0xffff0000, {R(PM+m)}")
    for s in range(10): oload(s)
    for s in range(8): ostep(s)
    a.lg0()

    GA, AV, PP = 128, 148, 168
    for j in range(5): a(f"ds_read_b128 {R(GA+4*j,4)}, v7 offset:{16*j}")
    for j in range(5): a(f"ds_read_b128 {R(AV+4*j,4)}, v7 offset:{1280+16*j}")
    a(f"v_mov_b32 v124, {L_MB+1600}\nds_read_b128 v[188:191], v124")
    ostep(8)
    a("s_waitcnt lgkmcnt(0)\ns_barrier")
    for j in range(5): a(f"ds_read_b128 {R(PP+4*j,4)}, v6 offset:{1024*j}")
    ostep(9)
    stamp("gemm2")
    a(f"""s_lshl_b32 {S(sT)}, {S(sTG)}, 13
          s_lshl_b32 {S(sT+1)}, {S(sKQ)}, 8
          s_add_u32 {S(sT)}, {S(sT)}, {S(sT+1)}
          s_add_u32 {S(sT)}, {S(sT)}, {W_STATS}
          s_lshl_b32 {S(sT+1)}, {S(sHG)}, 10
          s_add_u32 {S(sT+1)}, {S(sT+1)}, {S(sT)}
          s_add_u32 {S(sT+2)}, {S(sT)}, 4096
          s_mov_b32 vcc_lo, 0xaaaaaaaa
          s_mov_b32 vcc_hi, 0xaaaaaaaa
          s_waitcnt lgkmcnt(0)
          v_cndmask_b32 v67, v190, v189, vcc""")
    for m in range(10): a(f"v_pk_add_f32 {R(ACC+2*m,2)}, {R(ACC+2*m,2)}, {R(PP+2*m,2)}")
    for m in range(10): a(f"v_pk_fma_f32 {R(X1+2*m,2)}, {R(ACC+2*m,2)}, {R(GA+2*m,2)}, {R(X1+2*m,2)}")
    a(f"""v_pk_add_f32 v[72:73], {R(X1,2)}, {R(X1+2,2)}
          v_pk_mul_f32 v[74:75], {R(X1,2)}, {R(X1,2)}
          v_pk_mul_f32 v[76:77], {R(X1,2)}, {R(AV,2)}""")
    for m in range(1, 10):
        if m > 1: a(f"v_pk_add_f32 v[72:73], v[72:73], {R(X1+2*m,2)}")
        a(f"v_pk_fma_f32 v[74:75], {R(X1+2*m,2)}, {R(X1+2*m,2)}, v[74:75]\nv_pk_fma_f32 v[76:77], {R(X1+2*m,2)}, {R(AV+2*m,2)}, v[76:77]")
    a("v_add_f32 v64, v72, v73\nv_add_f32 v65, v74, v75\nv_add_f32 v66, v76, v77")
    def allreduce_g(regs, tmp):
        for sw in ("32", "16"):
            for k, r in enumerate(regs): a(f"v_mov_b32 {R(tmp+k)}, {R(r)}")
            a("s_nop 1")
            for k, r in enumerate(regs): a(f"v_permlane{sw}_swap_b32 {R(r)}, {R(tmp+k)}")
            for k, r in enumerate(regs): a(f"v_add_f32 {R(r)}, {R(r)}, {R(tmp+k)}")
    allreduce_g([64, 65, 66], 72)
    a("s_mov_b64 exec, 0xffff")
    pub([f"buffer_store_dwordx4 v[64:67], {R(vOL)}, {S(WS,4)}, {S(sT+1)} offen"])
    a("s_mov_b64 exec, -1")
    stamp("stats_pub")
    def statloads():
        a(f"""buffer_load_dwordx4 v[72:75], {R(vOL)}, {S(WS,4)}, {S(sT)} offen sc1
              buffer_load_dwordx4 v[76:79], {R(vOL)}, {S(WS,4)}, {S(sT+2)} offen sc1""")
    fimage()
    statloads()
    a("s_waitcnt lgkmcnt(0)")
    G2, SBV, GB = 128, 148, 168
    for j in range(5): a(f"ds_read_b128 {R(G2+4*j,4)}, v7 offset:{640+16*j}")
    for j in range(5): a(f"ds_read_b128 {R(SBV+4*j,4)}, v7 offset:{320+16*j}")
    for j in range(5): a(f"ds_read_b128 {R(GB+4*j,4)}, v7 offset:{960+16*j}")
    a(f"""s_lshl_b32 {S(sT+3)}, {S(sTG)}, 6
          s_lshl_b32 {S(sT+4)}, {S(sKQ)}, 4
          s_add_u32 {S(sT+3)}, {S(sT+3)}, {S(sT+4)}
          s_sub_u32 {S(sT+3)}, 2047, {S(sT+3)}
          v_sub_u32 v80, {S(sT+3)}, v2
          s_lshl_b32 {S(sT+4)}, {S(sKQ)}, 2
          s_add_u32 {S(sT+4)}, {S(sT+4)}, {L_KEYS}
          v_mov_b32 v81, {S(sT+4)}
          v_mov_b32 v82, {L_WIN}
          v_mul_u32_u24 v83, 40, v3""")
    a("s_waitcnt vmcnt(0)")
    poisoncheck(range(72, 80), 64)
    a("s_cbranch_vccnz L_stretry\nL_stok:")
    stamp("H4")
    a("v_pk_add_f32 v[64:65], v[72:73], v[76:77]\nv_pk_add_f32 v[66:67], v[74:75], v[78:79]")
    allreduce_g([64, 65, 66, 67], 72)
    a(f"""v_mul_f32 v64, {hex(fbits(1/640))}, v64
          v_mul_f32 v65, {hex(fbits(1/640))}, v65
          v_mov_b32_dpp v68, v67 quad_perm:[0,0,2,2] row_mask:0xf bank_mask:0xf
          v_mov_b32_dpp v69, v67 quad_perm:[1,1,3,3] row_mask:0xf bank_mask:0xf
          v_fma_f32 v65, -v64, v64, v65
          v_max_f32 v65, 0, v65
          v_add_f32 v65, {hex(fbits(1e-5))}, v65
          v_rsq_f32 v70, v65
          v_fma_f32 v66, -v64, v68, v66
          v_fma_f32 v66, v66, v70, v69
          v_mul_f32 v64, v64, v70
          v_ashrrev_i32 v67, 31, v66
          v_or_b32 v67, 0x80000000, v67
          v_xor_b32 v66, v66, v67
          v_and_b32 v66, 0xfffff800, v66
          v_or_b32 v66, v66, v80
          v_min_u32 v66, -2, v66
          s_nop 1
          v_max_u32_dpp v67, v66, v66 row_ror:8 row_mask:0xf bank_mask:0xf
          s_nop 1
          v_max_u32_dpp v67, v67, v67 row_ror:4 row_mask:0xf bank_mask:0xf
          s_nop 1
          v_max_u32_dpp v67, v67, v67 row_ror:2 row_mask:0xf bank_mask:0xf
          s_nop 1
          v_max_u32_dpp v67, v67, v67 row_ror:1 row_mask:0xf bank_mask:0xf
          s_mov_b64 exec, 1
          ds_write_b32 v81, v67
          s_mov_b64 exec, -1
          s_waitcnt lgkmcnt(0)
          s_barrier
          ds_read_b128 v[72:75], v82 offset:{L_KEYS-L_WIN}""")
    H2, PK, PK2 = 84, 104, 114
    for m in range(10): a(f"v_pk_fma_f32 {R(H2+2*m,2)}, {R(X1+2*m,2)}, v[70:71], v[64:65] op_sel_hi:[1,0,0] neg_lo:[0,0,1] neg_hi:[0,0,1]")
    for m in range(10): a(f"v_pk_fma_f32 {R(H2+2*m,2)}, {R(H2+2*m,2)}, {R(G2+2*m,2)}, {R(SBV+2*m,2)}")
    a(f"""s_waitcnt lgkmcnt(0)
          v_max_u32 v72, v72, v73
          v_max3_u32 v72, v72, v74, v75
          v_cmp_eq_u32 {S(sEX,2)}, v66, v72""")
    for m in range(10): a(f"v_cvt_pk_bf16_f32 {R(PK+m)}, {R(H2+2*m)}, {R(H2+2*m+1)}")
    l = a.label("norow")
    a(f"""s_lshl_b32 {S(sT+2)}, {S(sTG)}, 11
          s_lshl_b32 {S(sT+3)}, {S(sHG)}, 8
          s_add_u32 {S(sT+2)}, {S(sT+2)}, {S(sT+3)}
          s_add_u32 {S(sT+2)}, {S(sT+2)}, {W_H2ROW}
          s_cmp_eq_u64 {S(sEX,2)}, 0
          s_cbranch_scc1 {l}
          s_mov_b64 exec, {S(sEX,2)}
          buffer_store_dwordx4 {R(PK,4)}, v83, {S(WS,4)}, {S(sT+2)} offen sc1
          buffer_store_dwordx4 {R(PK+4,4)}, v83, {S(WS,4)}, {S(sT+2)} offen offset:16 sc1
          buffer_store_dwordx2 {R(PK+8,2)}, v83, {S(WS,4)}, {S(sT+2)} offen offset:32 sc1
          s_mov_b64 exec, -1
          {l}:""")
    stamp("row_pub")
    for m in range(10): a(f"v_pk_fma_f32 {R(X1+2*m,2)}, {R(H2+2*m,2)}, {R(GB+2*m,2)}, {R(X1+2*m,2)}")
    for m in range(10): a(f"v_cvt_pk_bf16_f32 {R(PK2+m)}, {R(X1+2*m)}, {R(X1+2*m+1)}")
    def outstore():
        a(f"""buffer_store_dwordx4 {R(PK2,4)}, {R(vXO)}, {S(OUT,4)}, {S(sXO)} offen {cfg.outsc}
              buffer_store_dwordx4 {R(PK2+4,4)}, {R(vXO)}, {S(OUT,4)}, {S(sXO)} offen offset:16 {cfg.outsc}
              buffer_store_dwordx2 {R(PK2+8,2)}, {R(vXO)}, {S(OUT,4)}, {S(sXO)} offen offset:32 {cfg.outsc}""")
    a(f"s_andn2_b64 exec, exec, {S(sEX,2)}")
    outstore()
    lw = a.label("winner"); lt = a.label("tail")
    a(f"""s_mov_b64 exec, -1
          s_barrier
          s_cmp_eq_u64 {S(sEX,2)}, 0
          s_cbranch_scc1 {lt}
          ds_read_b32 v73, v82
          s_waitcnt lgkmcnt(0)
          v_cmp_eq_u32 vcc, v73, v72
          s_mov_b64 exec, {S(sEX,2)}
          s_cbranch_vccnz {lw}""")
    outstore()
    a(f"""s_mov_b64 exec, -1
          s_branch {lt}
          {lw}:
          v_lshlrev_b32 v83, 1, v83
          s_lshl_b32 {S(sT+2)}, {S(sHG)}, 10
          s_add_u32 {S(sT+2)}, {S(sT+2)}, {W_BASE}""")
    for j in range(5):
        a(f"buffer_store_dwordx4 {R(X1+4*j,4)}, v83, {S(WS,4)}, {S(sT+2)} offen offset:{16*j} sc1")
        a(f"buffer_store_dwordx4 {R(GB+4*j,4)}, v83, {S(WS,4)}, {S(sT+2)} offen offset:{512+16*j} sc1")
    a(f"s_mov_b64 exec, -1\ns_branch {lt}")

    a(f"{lh}:\ns_setprio 1")
    a.lg = []
    for i in range(cfg.npre): wread(i)
    for s in range(10): oload(s)
    pend = list(range(cfg.npre, 50))
    for s in range(10):
        a(f"s_waitcnt vmcnt({9-s})")
        poisoncheck(range(OF+4*s, OF+4*s+4), 125)
        lr, lb = a.label("oretry"), a.label("oback")
        a(f"s_cbranch_vccnz {lr}\n{lb}:")
        retry.append((s, lr, lb))
        for j in range(5):
            i = 5*s + j
            a.wlg(("wf", i))
            a(f"v_mfma_f32_16x16x32_bf16 {R(ACC+4*j,4)}, {R(WB[i%NWF],4)}, {R(OF+4*s,4)}, {'0' if s == 0 else R(ACC+4*j,4)}")
            if pend: wread(pend.pop(0))
    a("s_nop 3")
    for j in range(5): a(f"ds_write_b128 v6, {R(ACC+4*j,4)} offset:{1024*j}")
    a("s_setprio 0")
    a.barrier()
    fimage()
    FW = 128
    l = a.label("x")
    a(f"""{l}:
          v_mov_b32 v210, {L_WIN}
          v_and_b32 v211, 31, v1
          v_lshlrev_b32 v211, 7, v211
          v_lshlrev_b32 v208, 4, v3
          v_lshrrev_b32 v209, 5, v1
          v_mul_u32_u24 v209, 96, v209
          v_add_u32 v209, v209, v208
          s_lshl_b32 {S(sT+1)}, {S(sTG)}, 7
          s_add_u32 {S(sT+1)}, {S(sT+1)}, {W_CAND}
          s_mov_b32 {S(sT)}, {W_CAND}""")
    a.barrier()
    l = if_wave("eq", 0)
    l2 = if_s(sHG, "eq", 0)
    a(f"""ds_read_b128 v[212:215], v210 offset:{L_KEYS-L_WIN}
          s_waitcnt lgkmcnt(0)
          v_max_u32 v212, v212, v213
          v_max3_u32 v212, v212, v214, v215
          s_mov_b64 exec, 1
          buffer_store_dword v212, v211, {S(WS,4)}, {S(sT+1)} offen sc1
          s_mov_b64 exec, -1
          {l2}:""")
    stamp("cand_pub")
    l2 = if_s(sB, "lt", 216)
    a(f"""v_bfe_u32 v8, v1, 2, 2
          v_lshl_add_u32 v8, v3, 3, v8
          v_lshlrev_b32 v8, 4, v8
          v_and_b32 v9, 1, v1
          v_lshl_add_u32 v8, v9, 3, v8
          v_bfe_u32 v9, v1, 1, 1
          v_mul_u32_u24 v9, {L_FU-L_FG}, v9
          v_add_u32 v8, v8, v9""")
    for s in range(20):
        for u in range(2): a(f"ds_read_b64_tr_b16 {R(FW+4*s+2*u,2)}, v8 offset:{L_FG + 512*s + 64*u}")
        if s % 6 == 5: a("s_waitcnt lgkmcnt(2)")
    a(f"{l2}:")
    if cfg.sl5: a(f"s_sleep {cfg.sl5}")
    sp = spin_begin()
    a(f"buffer_load_dword v212, v211, {S(WS,4)}, {S(sT)} offen sc1\ns_waitcnt vmcnt(0)")
    poisoncheck([212], 213)
    spin_end(sp)
    for rot in (8, 4, 2, 1):
        a(f"v_max_u32_dpp v212, v212, v212 row_ror:{rot} row_mask:0xf bank_mask:0xf\ns_nop 1")
    a(f"""v_readlane_b32 {S(sT)}, v212, 0
          v_readlane_b32 {S(sT+1)}, v212, 16
          s_nop 3
          s_max_u32 {S(sKEY)}, {S(sT)}, {S(sT+1)}
          v_mov_b32 v213, {S(sKEY)}
          ds_write_b32 v210, v213""")
    stamp("H5")
    if_s(sB, "lt", 216, l)
    a.c("FFN gate/up for 8 hidden units on the selected token")
    a(f"""s_and_b32 {S(sT)}, {S(sKEY)}, 2047
          s_sub_u32 {S(sT)}, 2047, {S(sT)}
          s_lshr_b32 {S(sT)}, {S(sT)}, 6
          s_lshl_b32 {S(sT)}, {S(sT)}, 11
          s_add_u32 {S(sT)}, {S(sT)}, {W_H2ROW}""")
    HF = 8
    def hloads():
        for s in range(20):
            c0 = 4 * s
            off = (c0 // 10) * 256 + (c0 % 10) * 16
            a(f"buffer_load_dwordx4 {R(HF+4*s,4)}, v{209 if c0 % 10 == 8 else 208}, {S(WS,4)}, {S(sT)} offen offset:{off} sc1")
    hloads()
    a(f"s_waitcnt lgkmcnt(0)\ns_barrier\ns_mov_b32 {S(sSPIN)}, 0\nL_f1go:")
    for s in range(20):
        a(f"s_waitcnt vmcnt({19-s})")
        a(f"v_mfma_f32_16x16x32_bf16 v[212:215], {R(FW+4*s,4)}, {R(HF+4*s,4)}, {'0' if s == 0 else 'v[212:215]'}")
        if s == 0: a(f"v_max_u32 v210, {R(HF)}, {R(HF+1)}")
        else: a(f"v_max3_u32 v210, v210, {R(HF+4*s)}, {R(HF+4*s+1)}")
        a(f"v_max3_u32 v210, v210, {R(HF+4*s+2)}, {R(HF+4*s+3)}")
    a("v_cmp_eq_u32 vcc, -1, v210\ns_cbranch_vccnz L_f1retry\nL_f1ok:\ns_nop 4")
    for j in range(4): a(f"v_mov_b32 v{216+j}, v{212+j}")
    a("s_nop 1")
    for j in range(4): a(f"v_permlane32_swap_b32 v{212+j}, v{216+j}")
    for j in range(4): a(f"v_mul_f32 v{220+j}, {hex(fbits(-LOG2E))}, v{212+j}")
    for j in range(4): a(f"v_exp_f32 v{220+j}, v{220+j}")
    for j in range(4): a(f"v_add_f32 v{220+j}, 1.0, v{220+j}")
    for j in range(4): a(f"v_rcp_f32 v{220+j}, v{220+j}")
    for j in range(4): a(f"v_mul_f32 v{212+j}, v{212+j}, v{216+j}")
    for j in range(4): a(f"v_mul_f32 v{212+j}, v{212+j}, v{220+j}")
    a(f"""v_cvt_pk_bf16_f32 v216, v212, v213
          v_cvt_pk_bf16_f32 v217, v214, v215
          s_mul_i32 {S(sT)}, {S(sFROLE)}, {ASTR}
          s_add_u32 {S(sT)}, {S(sT)}, {W_ACT}
          v_lshlrev_b32 v208, 3, v3
          s_mov_b64 exec, 0x10001
          buffer_store_dwordx2 v[216:217], v208, {S(WS,4)}, {S(sT)} offen sc1
          s_mov_b64 exec, -1""")
    stamp("act_pub")
    a(f"s_branch L_fin\n{l}:")
    a.barrier()

    a(f"""{lt}:
          s_cmp_ge_u32 {S(sB)}, 216
          s_cbranch_scc0 L_fin
          s_mul_i32 {S(sT)}, {S(sW)}, 7168
          v_add_u32 v64, {S(sT)}, {R(vK16)}""")
    l = if_wave("eq", 7)
    for i in range(8): a(f"v_mov_b32 {R(FR+20+i)}, 0")
    a(f"{l}:")
    for k in range(7): a(f"ds_write_b128 v64, {R(FR+4*k,4)} offset:{1024*k}")
    a(f"""v_bfe_u32 v65, v1, 2, 2
          v_lshl_add_u32 v65, v3, 3, v65
          v_lshlrev_b32 v65, 5, v65
          v_and_b32 v66, 3, v1
          v_lshl_add_u32 v65, v66, 3, v65
          v_add_u32 v65, {S(sT)}, v65
          s_waitcnt lgkmcnt(0)""")
    DW, AF = 192, 220
    for k in range(7):
        for u in range(2): a(f"ds_read_b64_tr_b16 {R(DW+4*k+2*u,2)}, v65 offset:{1024*k + 128*u}")
    a(f"""v_mul_u32_u24 v66, {ASTR}, v3
          v_lshlrev_b32 v67, 2, v2
          s_mul_i32 {S(sT)}, {S(sW)}, {7*4*ASTR}
          s_add_u32 {S(sT)}, {S(sT)}, {W_ACT}
          s_cmp_eq_u32 {S(sW)}, 7
          s_cselect_b32 {S(sT+1)}, {W_ACT}, {S(sT)}
          s_and_b32 {S(sT+2)}, {S(sB)}, 7
          s_lshl_b32 {S(sT+2)}, {S(sT+2)}, 10
          s_lshr_b32 {S(sT+3)}, {S(sB)}, 3
          s_sub_u32 {S(sT+3)}, {S(sT+3)}, 27
          s_lshl_b32 {S(sT+3)}, {S(sT+3)}, 6
          s_add_u32 {S(sT+2)}, {S(sT+2)}, {S(sT+3)}
          s_add_u32 {S(sT+2)}, {S(sT+2)}, {W_BASE}
          v_mov_b32 v68, 0
          v_mov_b32 v69, 0""")
    if cfg.sl6: a(f"s_sleep {cfg.sl6}")
    a("s_waitcnt lgkmcnt(0)")
    sp = spin_begin()
    for k in range(7):
        a(f"buffer_load_dwordx4 {R(AF+4*k,4)}, v66, {S(WS,4)}, {S(sT + (1 if k >= 5 else 0))} offen offset:{4*ASTR*k} sc1")
    l = if_wave("eq", 0)
    a(f"""buffer_load_dword v68, v67, {S(WS,4)}, {S(sT+2)} offen sc1
          buffer_load_dword v69, v67, {S(WS,4)}, {S(sT+2)} offen offset:512 sc1
          {l}:
          s_waitcnt vmcnt(0)""")
    poisoncheck(list(range(AF, AF + 28)) + [68, 69], 70)
    spin_end(sp)
    stamp("H6")
    for k in range(7):
        a(f"v_mfma_f32_16x16x32_bf16 v[72:75], {R(DW+4*k,4)}, {R(AF+4*k,4)}, {'0' if k == 0 else 'v[72:75]'}")
    a(f"""s_lshl_b32 {S(sT)}, {S(sW)}, 6
          s_add_u32 {S(sT)}, {S(sT)}, {L_RED}
          v_lshl_add_u32 v64, v3, 4, {S(sT)}
          s_mov_b32 exec_lo, 0x10001
          s_mov_b32 exec_hi, 0x10001
          s_nop 3
          ds_write_b128 v64, v[72:75]
          s_mov_b64 exec, -1""")
    l = if_wave("eq", 0)
    a(f"""s_and_b32 {S(sT+2)}, {S(sKEY)}, 0xfffff800
          s_not_b32 {S(sT+3)}, {S(sT+2)}
          s_xor_b32 {S(sT+4)}, {S(sT+2)}, 0x80000000
          s_cmp_lt_i32 {S(sT+2)}, 0
          s_cselect_b32 {S(sT+2)}, {S(sT+4)}, {S(sT+3)}
          v_mov_b32 v70, {hex(fbits(-LOG2E))}
          v_mul_f32 v70, {S(sT+2)}, v70
          v_exp_f32 v70, v70
          s_and_b32 {S(sT)}, {S(sKEY)}, 2047
          v_add_f32 v70, 1.0, v70
          v_rcp_f32 v70, v70
          s_sub_u32 {S(sT)}, 2047, {S(sT)}
          v_mul_f32 v69, v69, v70
          s_mul_i32 {S(sT)}, {S(sT)}, 1280
          s_lshl_b32 {S(sT+1)}, {S(sFROLE)}, 5
          s_add_u32 {S(sT)}, {S(sT)}, {S(sT+1)}
          v_add_u32 v65, {L_RED}, v67
          v_lshlrev_b32 v66, 1, v2
          {l}:""")
    a.barrier()
    if_s(sW, "eq", 0, "L_fin")
    for k in range(8): a(f"ds_read_b32 v{76+k}, v65 offset:{64*k}")
    a(f"""s_waitcnt lgkmcnt(0)
          v_add_f32 v76, v76, v77
          v_add_f32 v78, v78, v79
          v_add_f32 v80, v80, v81
          v_add_f32 v82, v82, v83
          v_add_f32 v76, v76, v78
          v_add_f32 v80, v80, v82
          v_add_f32 v76, v76, v80
          v_fma_f32 v68, v76, v69, v68
          v_cvt_pk_bf16_f32 v68, v68, v68
          s_mov_b64 exec, 0xffff
          buffer_store_short v68, v66, {S(OUT,4)}, {S(sT)} offen
          s_mov_b64 exec, -1""")
    a("L_fin:")
    if cfg.stamps:
        stamp("end")
        a(f"""s_lshl_b32 {S(sT)}, {S(sB)}, 3
              s_add_u32 {S(sT)}, {S(sT)}, {S(sW)}
              s_lshl_b32 {S(sT)}, {S(sT)}, 8
              s_add_u32 {S(sT)}, {S(sT)}, {W_DBG}
              v_lshlrev_b32 v2, 2, v1
              buffer_store_dword v0, v2, {S(WS,4)}, {S(sT)} offen""")
        if cfg.dbgout:
            a(f"""s_cmp_eq_u32 {S(sB)}, 100
                  s_cbranch_scc0 L_nodbg
                  s_cmp_eq_u32 {S(sW)}, 0
                  s_cbranch_scc0 L_nodbg
                  s_load_dwordx2 {S(C,2)}, s[0:1], 104
                  s_mov_b32 {S(C+2)}, 64
                  s_mov_b32 {S(C+3)}, 0x20000
                  v_readlane_b32 {S(sT)}, v0, 0
                  s_waitcnt lgkmcnt(0)
                  s_nop 1
                  v_subrev_u32 v0, {S(sT)}, v0
                  buffer_store_dword v0, v2, {S(C,4)}, 0 offen
                  L_nodbg:""")
    a("s_endpgm")

    for s, lr, lb in retry:
        a(f"{lr}:")
        sp = spin_begin()
        oload(s)
        a("s_waitcnt vmcnt(0)")
        poisoncheck(range(OF+4*s, OF+4*s+4), 125)
        spin_end(sp)
        for s2 in range(s + 1, 10): oload(s2)
        a(f"s_branch {lb}")
    if not cfg.h1pre:
        a("L_h1retry:")
        sp = spin_begin()
        h1loads()
        a("s_waitcnt vmcnt(0)")
        tagcheck(PH, 232)
        spin_end(sp)
        a("s_branch L_h1ok")
    a("L_h2retry:")
    sp = spin_begin()
    h2loads()
    h2check()
    spin_end(sp)
    a("s_branch L_h2ok\nL_stretry:")
    sp = spin_begin()
    statloads()
    a("s_waitcnt vmcnt(0)")
    poisoncheck(range(72, 80), 64)
    spin_end(sp)
    a("s_branch L_stok\nL_pfretry:")
    sp = spin_begin()
    a(pf_load() + "\ns_waitcnt vmcnt(0)")
    pf_check()
    spin_end(sp)
    a("s_branch L_pfok\nL_pmretry:")
    sp = spin_begin()
    pm_loads()
    a("s_waitcnt vmcnt(0)")
    tagcheck(PM, 128)
    spin_end(sp)
    a(f"""s_branch L_pmok
          L_f1retry:
          s_add_u32 {S(sSPIN)}, {S(sSPIN)}, 1
          s_cmp_lt_u32 {S(sSPIN)}, {SPIN_MAX}
          s_cbranch_scc0 L_f1ok""")
    hloads()
    a("s_branch L_f1go")

    a("L_slow:")
    M = 150
    a(f"v_mov_b32 {R(M)}, 0xff800000")
    for ps in range(2):
        lp = a.label("slowloop")
        if ps == 1:
            a(f"""v_mov_b32 {R(M+1)}, {R(M)}
                  s_nop 1
                  v_permlane32_swap_b32 {R(M)}, {R(M+1)}
                  v_max_f32 {R(M)}, {R(M)}, {R(M+1)}""")
            for i in range(16): a(f"v_mov_b32 {R(O_+i)}, 0")
        a(f"s_mov_b32 {S(sT+2)}, {W_KV}\n{lp}:")
        a(f"buffer_load_dwordx2 v[164:165], {R(vK8)}, {S(WS,4)}, {S(sT+2)} offen offset:2560 sc1")
        for hb in range(2):
            a(f"buffer_load_dwordx4 v[152:155], {R(vK16)}, {S(WS,4)}, {S(sT+2)} offen sc1")
            if ps == 1:
                a(f"""buffer_load_dwordx4 v[156:159], {R(vV)}, {S(WS,4)}, {S(sT+2)} offen offset:1024 sc1
                      buffer_load_dwordx4 v[160:163], {R(vV)}, {S(WS,4)}, {S(sT+2)} offen offset:1792 sc1""")
            a(f"""s_waitcnt vmcnt(0)
                  v_mfma_f32_32x32x4_2b_bf16 v[192:223], v[164:165], {R(QB,2)}, 0 cbsz:1 abid:{hb}
                  s_nop 15
                  s_nop 3
                  v_mfma_f32_32x32x16_bf16 v[192:207], v[152:155], {R(QA,4)}, v[192:207]
                  s_nop 15""")
            if ps == 0:
                for i in range(0, 16, 2): a(f"v_max3_f32 {R(M)}, {R(M)}, v{192+i}, v{193+i}")
            else:
                for i in range(16): a(f"v_sub_f32 v{192+i}, v{192+i}, {R(M)}")
                for i in range(16): a(f"v_exp_f32 v{192+i}, v{192+i}")
                a(f"""s_nop 2
                      v_smfmac_f32_32x32x32_bf16 {R(O_,16)}, v[156:159], v[192:199], {R(IDX)}
                      v_smfmac_f32_32x32x32_bf16 {R(O_,16)}, v[160:163], v[200:207], {R(IDX)}
                      s_nop 15""")
            a(f"s_add_u32 {S(sT+2)}, {S(sT+2)}, {KVT}")
        a(f"s_cmp_lt_u32 {S(sT+2)}, {W_KV + 64*KVT}\ns_cbranch_scc1 {lp}")
    a("s_branch L_slow_done")
    a("L_end:\ns_endpgm")
    a(".if (L_end - L_pc0) < 32768\n.error \"code shorter than the warm-up window\"\n.endif")
    return a.text()

def wrap(body):
    ref = open(f"cdna_kernels/{NAME}.s.ref").read().split("\n")
    head = [l for l in ref if l.startswith(";") and "@launch" not in l]
    return "\n".join(head) + f"""
; @launch grid=(256,1,1) block=(512,1,1) lds=163840
.amdgcn_target "amdgcn-amd-amdhsa--gfx950"
.text
.globl {NAME}_kernel
.p2align 8
.type {NAME}_kernel,@function
{NAME}_kernel:
{body}.section .rodata,"a"
.p2align 6
.amdhsa_kernel {NAME}_kernel
  .amdhsa_next_free_vgpr 256
  .amdhsa_next_free_sgpr 102
  .amdhsa_accum_offset 256
  .amdhsa_group_segment_fixed_size 0
  .amdhsa_kernarg_size 120
  .amdhsa_user_sgpr_count 2
  .amdhsa_user_sgpr_kernarg_segment_ptr 1
  .amdhsa_system_sgpr_workgroup_id_x 1
.end_amdhsa_kernel
"""

if __name__ == "__main__":
    import json
    cfg = Cfg()
    out = f"cdna_kernels/{NAME}.s"
    for arg in sys.argv[1:]:
        k, v = arg.split("=", 1)
        if k == "out": out = v
        else: setattr(cfg, k, json.loads(v))
    open(out, "w").write(wrap(gen(cfg)))
    if cfg.stamps: json.dump(cfg.stamp_names, open(out + ".stamps", "w"))
```

```python
import sys, struct
from asmlib import Asm, R, S

NAME = "adaLN_cond__grouped_kv_mqa__moe_arch_mod__prompt"
def fbits(x): return struct.unpack("<I", struct.pack("<f", x))[0]
LOG2E = 1.4426950408889634
KSCALE = 20 ** -0.5 * LOG2E

W_EPOCH = 0
W_MODP = 0x1000
W_KVF = 0x10000
W_CAND = 0x12000
W_ACT = 0x13000
W_BASE = 0x1A000
W_H2ROW = 0x1C000
W_PF = 0x2C000
W_RDY = 0x70000
W_STATS = 0x30000
W_KV = 0xA0000
W_O = 0x100000
W_DBG = 0x400000
W_H = 0x480000
W_CK = 0x700000
W_SIZE = 0x800000
OOB = 0x7f000000
KVT = 3072
ASTR = 64
L_WQ = 0
L_SCR = 102400
L_KVP = 153600
L_QP = 0
L_QS = 143360
L_LT = 110592
L_CNT = 163000
L_CKP = 160000
L_ST = 162816
QSTR = 208
L_WO = 0
L_FG = 0
L_FU = 10304
L_WP = 32768
L_PART = 123136
L_MB = 160000
L_WIN = 161792
L_KEYS = 161808
L_RED = 161920
sB, sW, sTG, sHG, sKQ, sTH = 2, 3, 4, 5, 6, 7
X, WQ, WK, WO, WM, C, WS, OUT, WR, F = 8, 12, 16, 20, 24, 28, 32, 36, 40, 44
WV = 96
sTAG = 48
sSPIN = 49
sT = 50
sKT = 60
sF0, sFSTEP, sFROLE, sM0 = 76, 77, 78, 79
sPTR = 80
sOST, sOLD, sXO, sMSO, sMOUT = 80, 81, 82, 83, 84
sDNP, sLTM = 94, 79
sWOFF = 90
GU, DN = 28, 96
sTB = 86
sFAST, sPFV, sFMAX = 85, 91, 92
sKEY = 93
sEX = 94
sEXA = 93
SPIN_MAX = 50000

class Cfg:
    stamps = False
    depth = 3
    prio = [4, 13, 15]
    quiet = 0
    p_at = 9
    h1pre = False
    diag = ''
    dw = 0
    ypre = 3
    flag_at = 3
    wb = 0
    wtouch = 2
    sl1 = 0
    qsplit = 0
    qs3 = 0
    ql = [2, 3]
    qpre = 15
    qw = 10
    qsl = 0
    qthr = None
    bh = 0
    htouch = False
    xat = 2
    wat = 1
    qs2 = 3
    qwait = True
    qtouch = False
    lt_at = [1, 3, 5]
    ltm_at = 9
    sl1r = 2
    force_slow = False
    dbgout = False
    only = None
    sl4 = 4
    sl5 = 2
    sl6 = 20
    outsc = ''
    rot = True
    npre = 18
    la = 3
    laq = 4
    xp = ''
    h2at = 19
    bar_at = 7
    fsc = ''
    f_at = [12, 15, 18, 21, 24, 27, 28]
    wo_at = [10, 11, 13, 14, 16, 17, 19, 20, 22, 23, 25, 26, 28]
    wsc = ''
    clk = True
    tsc = ''
    msc = 'nt'
    qsc = ''
    xsc = ''
    tch_at = [0, 2, 4, 6]
    t_at = 17
    late_at = 29
    sld = 'sc1'

def srd(a, base, size):
    a(f"s_mov_b32 {S(base+2)}, {size}\ns_mov_b32 {S(base+3)}, 0x20000")

def gen(cfg):
    a = Asm()
    stamp_n = [0]
    def stamp(name):
        if cfg.diag == "at:" + name:
            lab = a.label("dg")
            a(f"s_cmp_eq_u32 {S(sW)}, {cfg.dw}\ns_cbranch_scc0 {lab}\ns_memrealtime s[100:101]\n{lab}:")
        if not cfg.stamps or (cfg.only and name not in cfg.only): return
        i = stamp_n[0]; stamp_n[0] += 1
        a.c(f"stamp {i} {name}")
        a(f"s_memrealtime s[100:101]\ns_waitcnt lgkmcnt(0)\nv_writelane_b32 v0, s100, {i}")
        if cfg.clk: a(f"s_memtime s[100:101]\ns_waitcnt lgkmcnt(0)\nv_writelane_b32 v0, s100, {32+i}")
        a.lg = []
        cfg.stamp_names.append(name)
    cfg.stamp_names = []

    def spin_begin():
        lab = a.label("spin")
        a(f"s_mov_b32 {S(sSPIN)}, 0\n{lab}:")
        return lab
    def spin_end(lab):
        done = a.label("got")
        a(f"""s_cbranch_vccz {done}
              s_add_u32 {S(sSPIN)}, {S(sSPIN)}, 1
              s_cmp_lt_u32 {S(sSPIN)}, {SPIN_MAX}
              s_cbranch_scc1 {lab}
              {done}:""")
    def if_wave(cond, val):
        lab = a.label("skip")
        a(f"s_cmp_{cond}_u32 {S(sW)}, {val}\ns_cbranch_scc0 {lab}")
        return lab
    def tagcheck(p, err):
        for j in range(16): a(f"v_xor_b32 {R(p+j)}, {S(sTB+(j&3))}, {R(p+j)}")
        a(f"v_or_b32 {R(err)}, {R(p)}, {R(p+1)}")
        for j in range(2, 16, 2): a(f"v_or3_b32 {R(err)}, {R(err)}, {R(p+j)}, {R(p+j+1)}")
        a(f"v_and_b32 {R(err)}, 0xff, {R(err)}\nv_cmp_ne_u32 vcc, 0, {R(err)}")
    def poisoncheck(regs, t):
        regs = list(regs)
        if len(regs) == 1:
            a(f"v_cmp_eq_u32 vcc, -1, {R(regs[0])}"); return
        if len(regs) % 2 == 0:
            a(f"v_max_u32 {R(t)}, {R(regs[0])}, {R(regs[1])}"); rest = regs[2:]
        else:
            a(f"v_max3_u32 {R(t)}, {R(regs[0])}, {R(regs[1])}, {R(regs[2])}"); rest = regs[3:]
        for i in range(0, len(rest), 2):
            a(f"v_max3_u32 {R(t)}, {R(t)}, {R(rest[i])}, {R(rest[i+1])}")
        a(f"v_cmp_eq_u32 vcc, -1, {R(t)}")
    def div10(idx, row, pc):
        a(f"""v_mul_u32_u24 {R(row)}, 6554, {R(idx)}
              v_lshrrev_b32 {R(row)}, 16, {R(row)}
              v_mul_u32_u24 {R(pc)}, 10, {R(row)}
              v_sub_u32 {R(pc)}, {R(idx)}, {R(pc)}""")

    def mod_index(pair, half, so, sout, sc):
        a(f"""s_and_b32 {S(sc)}, {S(pair)}, 3
              s_lshr_b32 {S(pair)}, {S(pair)}, 2
              s_lshl_b32 {S(pair)}, {S(pair)}, 1
              s_add_u32 {S(pair)}, {S(pair)}, {S(half)}
              s_mul_i32 {S(so)}, {S(sc)}, {160*7680}
              s_lshl_b32 {S(half)}, {S(pair)}, 6
              s_add_u32 {S(so)}, {S(so)}, {S(half)}
              s_mul_i32 {S(sout)}, {S(sc)}, 15360
              s_lshl_b32 {S(half)}, {S(pair)}, 7
              s_add_u32 {S(sout)}, {S(sout)}, {S(half)}
              s_add_u32 {S(sout)}, {S(sout)}, {W_MODP}
              s_mul_i32 {S(sc)}, {S(sc)}, 320""")
    def mod_c(craw, t0, sc):
        a(f"v_lshrrev_b32 {R(t0)}, 2, v1\nv_mul_u32_u24 {R(t0)}, 20, {R(t0)}")
        a.vmem(f"buffer_load_dwordx4 {R(craw,4)}, {R(t0)}, {S(C,4)}, {S(sc)} offen", "c")
        a.vmem(f"buffer_load_dword {R(craw+4)}, {R(t0)}, {S(C,4)}, {S(sc)} offen offset:16", "c")
    def mod_w(wregs, t0, so):
        a(f"""v_lshrrev_b32 {R(t0)}, 2, v1
              v_mul_u32_u24 {R(t0)}, 76800, {R(t0)}
              v_and_b32 {R(t0+1)}, 3, v1
              v_lshl_add_u32 {R(t0)}, {R(t0+1)}, 4, {R(t0)}""")
        for i in range(10):
            a.vmem(f"buffer_load_dwordx4 {R(wregs[i],4)}, {R(t0)}, {S(WM,4)}, {S(so)} offen {cfg.msc}", ("wm", i))
            if i < 9: a(f"s_add_u32 {S(so)}, {S(so)}, 7680")
    def mod_silu(craw, lo, hi):
        a.wvm("c")
        for i in range(10):
            a(f"v_and_b32 {R(lo+i)}, 0xffff0000, {R(craw+i//2)}" if i & 1 else f"v_lshlrev_b32 {R(lo+i)}, 16, {R(craw+i//2)}")
        for i in range(10): a(f"v_mul_f32 {R(hi+i)}, {hex(fbits(-LOG2E))}, {R(lo+i)}")
        for i in range(10): a(f"v_exp_f32 {R(hi+i)}, {R(hi+i)}")
        for i in range(10): a(f"v_add_f32 {R(hi+i)}, 1.0, {R(hi+i)}")
        for i in range(10): a(f"v_rcp_f32 {R(hi+i)}, {R(hi+i)}")
        for i in range(10): a(f"v_mul_f32 {R(hi+i)}, {R(hi+i)}, {R(lo+i)}")
        for i in range(10): a(f"v_cvt_pk_bf16_f32 {R(lo+i)}, {R(hi+i)}, 0")
        for i in range(10): a(f"v_lshlrev_b32 {R(hi+i)}, 16, {R(lo+i)}")
    def mod_dot(wregs, lo, hi, acc, t0, sout):
        a(f"""v_bfe_u32 {R(t0)}, v1, 4, 1
              v_lshlrev_b32 {R(t0)}, 4, {R(t0)}
              v_lshrrev_b32 {R(t0)}, {R(t0)}, {S(sTAG)}
              v_lshrrev_b32 {R(t0+1)}, 8, {R(t0)}
              v_and_b32 {R(t0+2)}, 3, v1
              v_lshlrev_b32 {R(t0+2)}, 5, {R(t0+2)}
              v_lshl_add_u32 {R(t0+2)}, v3, 3, {R(t0+2)}
              v_and_b32 {R(t0+3)}, 12, v1
              v_lshl_add_u32 {R(t0+2)}, {R(t0+3)}, 26, {R(t0+2)}
              s_movk_i32 {S(sT)}, 0xff""")
        for i in range(10):
            a.wvm(("wm", i))
            for m in range(4):
                for hh, sv in ((0, lo), (1, hi)):
                    c_in = "0" if i == 0 else R(acc + 2*m + hh)
                    a(f"v_dot2_f32_bf16 {R(acc+2*m+hh)}, {R(wregs[i]+m)}, {R(sv+i)}, {c_in}")
        a("s_nop 2")
        for k in range(4): a(f"v_permlane32_swap_b32 {R(acc+k)}, {R(acc+k+4)}")
        for k in range(4): a(f"v_add_f32 {R(acc+k)}, {R(acc+k)}, {R(acc+k+4)}")
        a("s_nop 1")
        for k in range(2): a(f"v_permlane16_swap_b32 {R(acc+k)}, {R(acc+k+2)}")
        for k in range(2): a(f"v_add_f32 {R(acc+k)}, {R(acc+k)}, {R(acc+k+2)}")
        a("s_nop 1")
        for k in range(2): a(f"v_add_f32_dpp {R(acc+k)}, {R(acc+k)}, {R(acc+k)} row_ror:8 row_mask:0xf bank_mask:0xf")
        a("s_nop 1")
        for k in range(2): a(f"v_add_f32_dpp {R(acc+k)}, {R(acc+k)}, {R(acc+k)} row_ror:4 row_mask:0xf bank_mask:0xf")
        for k in range(2): a(f"v_bfi_b32 {R(acc+k)}, {S(sT)}, {R(t0+k)}, {R(acc+k)}")
        a.vmem(f"buffer_store_dwordx2 {R(acc,2)}, {R(t0+2)}, {S(WS,4)}, {S(sout)} offen sc1", "modst")
    def sum4_round(p, one):
        for j in range(2):
            a(f"""v_pk_add_f32 {R(p+2*j,2)}, {R(p+2*j,2)}, {R(p+4+2*j,2)}
                  v_pk_add_f32 {R(p+8+2*j,2)}, {R(p+8+2*j,2)}, {R(p+12+2*j,2)}""")
        for j in range(2): a(f"v_pk_add_f32 {R(p+2*j,2)}, {R(p+2*j,2)}, {R(p+8+2*j,2)}")
        for j in range(4): a(f"v_cvt_pk_bf16_f32 {R(p+j)}, 0, {R(p+j)}")
        for j in range(4): a(f"v_add_f32 {R(p+j)}, {one}, {R(p+j)}")
        for j in range(4): a(f"v_cvt_pk_bf16_f32 {R(p+j)}, 0, {R(p+j)}")
    def if_s(reg, cond, val, lab=None):
        lab = lab or a.label("skip")
        a(f"s_cmp_{cond}_u32 {S(reg)}, {val}\ns_cbranch_scc0 {lab}")
        return lab

    vK16, vK8, vV, IDX = 4, 5, 6, 7
    QAD = 28
    AB, A2a, A2b, A4a, A4b, vOL, vXO = 56, 57, 58, 59, 60, 61, 62
    WOA, vF, vOS = 168, 173, 174
    FA = 8
    xrow = f"global_load_dwordx4 v[104:107], v20, {S(X,2)}\nglobal_load_dword v108, v18, {S(X,2)} offset:1024"
    if cfg.stamps: a("s_memrealtime s[98:99]")
    if cfg.diag: a("s_memrealtime s[100:101]")
    a(f"""s_load_dwordx2 {S(WM,2)}, s[0:1], 88
          s_load_dwordx2 {S(C,2)}, s[0:1], 80
          s_load_dwordx2 {S(X,2)}, s[0:1], 0
          s_load_dwordx2 {S(WS,2)}, s[0:1], 112
          s_cmp_ge_u32 s2, 256
          s_cbranch_scc1 L_end
          s_getpc_b64 {S(sT,2)}
          L_pc0:
          v_lshrrev_b32 v2, 6, v0
          s_and_b32 {S(sT+2)}, {S(sB)}, 0xf8
          v_add_u32 v3, {S(sT+2)}, v2
          v_and_b32 v1, 63, v0
          v_readfirstlane_b32 {S(sW)}, v2
          v_lshlrev_b32 v3, 7, v3
          v_min_u32 v3, L_end-L_pc0, v3
          global_load_dword v15, v3, {S(sT,2)}
          s_mov_b32 {S(WM+3)}, 0x20000
          s_mov_b32 {S(WM+2)}, {640*7680}
          s_mov_b32 {S(C+3)}, {S(WM+3)}
          s_movk_i32 {S(C+2)}, 1280
          s_and_b32 {S(sT+2)}, {S(sB)}, 3
          s_lshr_b32 {S(sT)}, {S(sB)}, 4
          s_lshl_b32 {S(sT)}, {S(sT)}, 2
          s_bfe_u32 {S(sT+1)}, {S(sB)}, 0x10002
          s_lshl_b32 {S(sT+1)}, {S(sT+1)}, 1
          s_add_u32 {S(sT)}, {S(sT)}, {S(sT+1)}
          s_bfe_u32 {S(sT+1)}, {S(sB)}, 0x10003
          s_add_u32 {S(sT)}, {S(sT)}, {S(sT+1)}
          s_mul_i32 {S(sT+8)}, {S(sT+2)}, {160*7680}
          s_lshl_b32 {S(sT+1)}, {S(sT)}, 6
          s_add_u32 {S(sT+8)}, {S(sT+8)}, {S(sT+1)}
          v_lshrrev_b32 v10, 2, v1
          v_mul_u32_u24 v12, 76800, v10
          v_and_b32 v13, 3, v1
          v_lshl_add_u32 v12, v13, 4, v12
          v_mul_u32_u24 v10, 20, v10
          s_mul_i32 {S(sT+3)}, {S(sT+2)}, 320
          s_and_b32 {S(sTG)}, {S(sB)}, 31
          s_lshr_b32 {S(sHG)}, {S(sB)}, 5
          s_lshl_b32 {S(sT+1)}, {S(sTG)}, 3
          s_add_u32 {S(sT+1)}, {S(sT+1)}, {S(sHG)}
          s_lshl_b32 {S(sT+1)}, {S(sT+1)}, 3
          s_add_u32 {S(sT+1)}, {S(sT+1)}, {S(sW)}
          s_mul_i32 {S(sT+1)}, {S(sT+1)}, 1280
          v_lshl_add_u32 v20, v1, 4, {S(sT+1)}
          v_lshl_add_u32 v18, v1, 2, {S(sT+1)}
          v_mov_b32 v17, 0
          s_mul_i32 {S(sT+1)}, {S(sW)}, 160
          s_add_u32 {S(sT+1)}, {S(sT+1)}, {S(sB)}
          s_cmp_lt_u32 {S(sT+1)}, 160
          s_waitcnt lgkmcnt(0)
          global_load_dword v63, v17, {S(WS,2)} sc1
          {xrow if cfg.xat == 0 else ""}
          s_cbranch_scc0 L_nomod
          s_setprio 3""")
    MWE = [216 + 4*i for i in range(10)]
    MC, MLO, MHI = 208, 80, 90
    a.c("wave 0 of 160 workgroups: shift / scale columns of the modulation")
    a(f"buffer_load_dwordx4 {R(MC,4)}, v10, {S(C,4)}, {S(sT+3)} offen\nbuffer_load_dword {R(MC+4)}, v10, {S(C,4)}, {S(sT+3)} offen offset:16")
    for i in range(10):
        a(f"buffer_load_dwordx4 {R(MWE[i],4)}, v12, {S(WM,4)}, {S(sT+8)} offen {cfg.msc}")
        if i < 9: a(f"s_addk_i32 {S(sT+8)}, 7680")
    a(f"""s_mul_i32 {S(sT+9)}, {S(sT+2)}, 15360
          s_lshl_b32 {S(sT)}, {S(sT)}, 7
          s_add_u32 {S(sT+9)}, {S(sT+9)}, {S(sT)}
          s_add_u32 {S(sT+9)}, {S(sT+9)}, {W_MODP}
          v_mov_b32 v17, {S(sT+9)}
          global_load_dword v15, v17, {S(WS,2)} sc1
          L_nomod:
          s_load_dwordx2 {S(WQ,2)}, s[0:1], 8
          s_load_dwordx2 {S(WK,2)}, s[0:1], 16
          s_load_dwordx2 {S(WV,2)}, s[0:1], 24""")
    vE = 63
    if cfg.stamps:
        a("v_mov_b32 v0, 0\ns_nop 1\nv_writelane_b32 v0, s98, 0")
        stamp_n[0] = 1; cfg.stamp_names.append("entry")
    for r in (WS, X, WQ, WK, WV): a(f"s_mov_b32 {S(r+3)}, {S(WM+3)}")
    a(f"""s_mov_b32 {S(WS+2)}, {W_SIZE}
          s_mov_b32 {S(X+2)}, {2048*1280}
          s_mov_b32 {S(WQ+2)}, {640*1280}
          s_movk_i32 {S(WK+2)}, 25600
          s_movk_i32 {S(WV+2)}, 25600
          s_and_b32 {S(sKQ)}, {S(sW)}, 3
          s_lshr_b32 {S(sTH)}, {S(sW)}, 2
          v_lshlrev_b32 {R(vK16)}, 4, v1
          v_lshrrev_b32 v3, 4, v1""")
    stamp("karg")
    def tag_from_epoch():
        a(f"""v_readfirstlane_b32 {S(sTAG)}, {R(vE)}
              s_getreg_b32 {S(sPFV)}, hwreg(HW_REG_XCC_ID, 0, 4)
              s_nop 2
              s_add_u32 {S(sTAG)}, {S(sTAG)}, 0x01010101
              s_xor_b32 {S(sPFV)}, {S(sPFV)}, {S(sTAG)}""")
    def tag_bytes():
        a(f"""s_and_b32 {S(sTB)}, {S(sTAG)}, 0xff
              s_bfe_u32 {S(sTB+1)}, {S(sTAG)}, 0x80008
              s_bfe_u32 {S(sTB+2)}, {S(sTAG)}, 0x80010
              s_lshr_b32 {S(sTB+3)}, {S(sTAG)}, 24""")
    L_set = a.label("setup"); L_dma = a.label("dma"); L_prod = a.label("prod")
    XR, XN = 80, 64
    def warm1():
        l = if_wave("ge", 6)
        a.c("waves 6,7: first warm-up level - chip-wide share of wq, per-die shares of wk / wv, the ready-hint line")
        a(f"""s_setprio 1
              v_lshlrev_b32 v10, 7, v1
              s_lshl_b32 {S(sT)}, {S(sB)}, 1
              s_and_b32 {S(sT+1)}, {S(sW)}, 1
              s_add_u32 {S(sT)}, {S(sT)}, {S(sT+1)}
              s_mul_i32 {S(sT)}, {S(sT)}, 1600
              s_andn2_b32 {S(sT)}, {S(sT)}, 127
              s_lshr_b32 {S(sT+2)}, {S(sB)}, 3
              s_lshl_b32 {S(sT+2)}, {S(sT+2)}, 1
              s_add_u32 {S(sT+2)}, {S(sT+2)}, {S(sT+1)}
              s_mul_i32 {S(sT+2)}, {S(sT+2)}, 400
              s_andn2_b32 {S(sT+2)}, {S(sT+2)}, 127
              s_lshl_b32 {S(sT+3)}, {S(sTG)}, 10
              s_lshl_b32 {S(sT+1)}, {S(sHG)}, 7
              s_add_u32 {S(sT+3)}, {S(sT+3)}, {S(sT+1)}
              s_add_u32 {S(sT+3)}, {S(sT+3)}, {W_RDY}
              {'s_waitcnt lgkmcnt(0)' if cfg.wat == 1 else ''}
              s_mov_b64 exec, 0x1fff
              buffer_load_dword v15, v10, {S(WQ,4)}, {S(sT)} offen
              s_mov_b64 exec, 0xf
              buffer_load_dword v15, v10, {S(WK,4)}, {S(sT+2)} offen
              buffer_load_dword v15, v10, {S(WV,4)}, {S(sT+2)} offen
              s_mov_b64 exec, 1
              buffer_load_dword v15, v10, {S(WS,4)}, {S(sT+3)} offen sc1
              s_mov_b64 exec, -1
              {l}:""")
    MCL = 52
    def cond_loads():
        a.c("conditioning values for the gate columns, handled during attention: 64 columns x rows 8(w+8i)+(l>>3)")
        a(f"""s_sub_u32 {S(sT)}, {S(sB)}, 16
              s_and_b32 {S(sT+1)}, {S(sT)}, 3
              s_lshr_b32 {S(sT)}, {S(sT)}, 2
              s_min_u32 {S(sT)}, {S(sT)}, 59
              s_mul_i32 {S(sMOUT)}, {S(sT+1)}, 15360
              s_lshl_b32 {S(sT+2)}, {S(sT)}, 8
              s_add_u32 {S(sMOUT)}, {S(sMOUT)}, {S(sT+2)}
              s_add_u32 {S(sMOUT)}, {S(sMOUT)}, {W_MODP}
              s_mul_i32 {S(sT+1)}, {S(sT+1)}, 20
              s_add_u32 {S(sT+1)}, {S(sT+1)}, {S(sW)}
              s_mul_i32 {S(sMSO)}, {S(sT+1)}, {8*7680}
              s_lshl_b32 {S(sT+2)}, {S(sT)}, 7
              s_add_u32 {S(sMSO)}, {S(sMSO)}, {S(sT+2)}
              s_lshl_b32 {S(sT+1)}, {S(sT+1)}, 4
              v_lshrrev_b32 v13, 3, v1
              v_lshlrev_b32 v14, 1, v13
              v_mul_u32_u24 v13, 7680, v13
              v_and_b32 v16, 7, v1
              v_lshl_add_u32 v55, v16, 4, v13""")
        for i in range(3): a(f"buffer_load_ushort {R(MCL+i)}, v14, {S(C,4)}, {S(sT+1)} offen offset:{128*i}")
    def early(pos):
        if cfg.xat == pos: a(xrow)
        if cfg.wat == pos: warm1()
    early(1)
    stamp("issued")

    a(f"""s_waitcnt lgkmcnt(0)
          s_load_dwordx2 {S(WO,2)}, s[0:1], 32
          s_load_dwordx2 {S(WR,2)}, s[0:1], 48
          s_load_dwordx2 {S(OUT,2)}, s[0:1], 96
          s_load_dwordx2 {S(sPTR+6,2)}, s[0:1], 56
          s_load_dwordx2 {S(sPTR+8,2)}, s[0:1], 64
          s_load_dwordx2 {S(sDNP,2)}, s[0:1], 72
          v_and_b32 v2, 15, v1
          v_lshlrev_b32 {R(vK8)}, 3, v1
          v_mov_b32 {R(IDX)}, 0xdddddddd""")
    a.c("weight-slice DMA offsets: piece 64*(8j+w)+l of a [rows][10 x 16 B] image")
    a(f"s_lshl_b32 {S(sT)}, {S(sW)}, 6\nv_add_u32 v64, {S(sT)}, v1\ns_mul_i32 {S(sWOFF)}, {S(sHG)}, 160")
    for j in range(5):
        div10(64, 65, 66)
        a(f"v_mul_u32_u24 v65, 1280, v65\nv_lshl_add_u32 {R(WOA+j)}, v66, 4, v65")
        if j < 4: a("v_add_u32 v64, 512, v64")
    a.c("V fragment rows: 20 value rows, two all-ones rows, the rest read as zero")
    a(f"""v_and_b32 v64, 31, v1
          v_lshrrev_b32 v65, 5, v1
          v_mul_u32_u24 v66, 20, v65
          v_add_u32 v66, v66, v64
          v_cmp_lt_u32 vcc, 19, v64
          v_subrev_u32 v67, 2, v66
          v_mov_b32 v68, 40
          v_cndmask_b32 v66, v66, v67, vcc
          v_and_b32 v67, 27, v64
          v_cmp_eq_u32 vcc, 18, v67
          v_mov_b32 v69, {OOB >> 4}
          s_mov_b32 {S(sT)}, 0xff880000
          v_cndmask_b32 v66, v66, v68, vcc
          s_mov_b32 {S(sT+1)}, 0xff880000
          s_nop 0
          v_cndmask_b32 v66, v66, v69, {S(sT,2)}
          v_lshlrev_b32 {R(vV)}, 4, v66""")
    early(2)
    a.c("key tiles of this wave's quarter, start rotated per workgroup")
    a(f"""s_mul_i32 {S(sT)}, {S(sKQ)}, {16*KVT}
          s_add_u32 {S(sT)}, {S(sT)}, {W_KV}
          s_bfe_u32 {S(sT+1)}, {S(sB)}, {0x30003 if cfg.rot else 0}""")
    for p in range(8):
        a(f"""s_mul_i32 {S(sKT+2*p)}, {S(sT+1)}, {2*KVT}
              s_add_u32 {S(sKT+2*p)}, {S(sKT+2*p)}, {S(sT)}
              s_add_u32 {S(sKT+2*p+1)}, {S(sKT+2*p)}, {KVT}""")
        if p < 7: a(f"s_add_u32 {S(sT+1)}, {S(sT+1)}, 1\ns_and_b32 {S(sT+1)}, {S(sT+1)}, 7")
    a.c("Q fragment addresses; local tile i is q-tile 4*(w>>2) + ((w+i)&3); o store offsets")
    a(f"""v_and_b32 v64, 7, v1
          v_bfe_u32 v66, v1, 3, 2
          v_lshlrev_b32 v67, 4, v64
          v_lshl_add_u32 v67, v65, 10, v67
          v_lshl_add_u32 {R(vOS+1)}, v66, 2, v67
          v_add_u32 {R(vOS+1)}, 8192, {R(vOS+1)}
          v_lshl_add_u32 {R(vOS)}, v66, 11, v67
          v_mul_u32_u24 v64, {QSTR}, v64
          v_mul_u32_u24 v66, 48, v66
          v_lshlrev_b32 v67, 4, v65
          v_add3_u32 v64, v64, v66, v67
          s_and_b32 {S(sT)}, {S(sW)}, 4""")
    for i in range(4):
        a(f"""s_add_u32 {S(sT+1)}, {S(sW)}, {i}
              s_and_b32 {S(sT+1)}, {S(sT+1)}, 3
              s_or_b32 {S(sT+1)}, {S(sT+1)}, {S(sT)}
              s_mul_i32 {S(sT+1)}, {S(sT+1)}, {8*QSTR}
              s_add_u32 {S(sT+1)}, {S(sT+1)}, {L_QS}
              v_add_u32 {R(QAD+i)}, {S(sT+1)}, v64""")
    a.c("wo row addresses follow the channel order of the o chunks")
    a(f"""v_cmp_lt_u32 vcc, 31, v1
          v_bfe_u32 v68, v1, 2, 2
          v_bfe_u32 v69, v1, 4, 1
          v_cndmask_b32 {R(QAD+4)}, {R(QAD)}, {R(QAD+1)}, vcc
          v_cndmask_b32 {R(QAD+5)}, {R(QAD+2)}, {R(QAD+3)}, vcc
          v_sub_u32 {R(QAD+4)}, {R(QAD+4)}, v67
          v_sub_u32 {R(QAD+5)}, {R(QAD+5)}, v67
          v_lshl_add_u32 v70, v69, 2, v68
          v_mul_u32_u24 v71, 20, v65
          v_add_u32 v71, v71, v70
          v_lshrrev_b32 v72, 1, v68
          v_mul_u32_u24 v72, 20, v72
          v_and_b32 v73, 1, v68
          v_lshl_add_u32 v72, v69, 1, v72
          v_add3_u32 v72, v72, v73, 16
          v_and_b32 v73, 3, v1
          v_mul_u32_u24 v74, 40, v73
          s_lshl_b32 {S(sT)}, {S(sTH)}, 1
          s_and_b32 {S(sT+1)}, {S(sW)}, 1
          s_add_u32 {S(sT)}, {S(sT)}, {S(sT+1)}
          s_mul_i32 {S(sT)}, {S(sT)}, 25600
          v_mul_u32_u24 v71, 160, v71
          v_mul_u32_u24 v72, 160, v72
          v_add3_u32 {R(AB)}, v71, v74, {S(sT)}
          v_add3_u32 v72, v72, v74, {S(sT)}
          v_add_u32 v75, {60*160}, {R(AB)}
          v_add_u32 v76, {68*160}, {R(AB)}
          v_add_u32 v77, {40*160}, v72
          v_cndmask_b32 {R(A2a)}, v72, v75, vcc
          v_cndmask_b32 {R(A2b)}, v77, v76, vcc
          v_add_u32 v75, {140*160}, {R(AB)}
          v_add_u32 v76, {148*160}, {R(AB)}
          v_add_u32 v77, {80*160}, v72
          v_add_u32 v72, {120*160}, v72
          v_cndmask_b32 {R(A4a)}, v75, v77, vcc
          v_cndmask_b32 {R(A4b)}, v76, v72, vcc
          v_lshlrev_b32 v75, 4, v2
          v_lshl_add_u32 {R(vOL)}, v3, 10, v75
          v_mul_u32_u24 v75, 1280, v2
          v_mul_u32_u24 v76, 40, v3
          v_add_u32 {R(vXO)}, v75, v76""")
    early(3)
    cond_loads()
    a.c("wq fragment rows 64s + 32kh + 8kg + r, upper four first on odd kg; check-word and Q staging addresses")
    aW, vCK, aQS = 46, 50, 51
    a(f"""v_lshl_add_u32 v70, v3, 3, v70
          s_and_b32 {S(sT)}, {S(sW)}, 1
          s_lshl_b32 {S(sT)}, {S(sT)}, 1
          s_add_u32 {S(sT)}, {S(sT)}, {S(sTH)}
          s_mul_i32 {S(sT)}, {S(sT)}, {32*160}
          v_mul_u32_u24 v71, 160, v70
          v_add3_u32 {R(aW)}, v71, v74, {S(sT)}
          v_xor_b32 v70, 4, v70
          v_mul_u32_u24 v71, 160, v70
          v_add3_u32 {R(aW+1)}, v71, v74, {S(sT)}
          v_add_u32 {R(aW+2)}, 61440, {R(aW)}
          v_add_u32 {R(aW+3)}, 61440, {R(aW+1)}
          v_and_b32 v71, 7, v1
          v_lshlrev_b32 v71, 2, v71
          v_lshl_add_u32 v71, v3, 5, v71
          v_and_b32 v72, 8, v1
          v_lshl_add_u32 {R(vCK)}, v72, 6, v71
          s_mul_i32 {S(sT)}, {S(sKQ)}, {16*QSTR}
          s_add_u32 {S(sT)}, {S(sT)}, {L_QS}
          v_mul_u32_u24 v71, {QSTR}, v2
          v_mul_u32_u24 v72, 48, v3
          v_add3_u32 {R(aQS)}, v71, v72, {S(sT)}
          s_cmp_ge_u32 {S(sB)}, 96
          s_cselect_b32 {S(sLTM)}, -1, 1
          s_waitcnt lgkmcnt(0)""")
    srd(a, WO, 640*1280); srd(a, OUT, 2048*1280); srd(a, WR, 1280); srd(a, F, 640*3456)
    l1 = a.label("f2"); lj = a.label("fset")
    a(f"""s_and_b32 {S(sT)}, {S(sB)}, 7
          s_lshr_b32 {S(sT+1)}, {S(sB)}, 3
          s_cmp_lt_u32 {S(sB)}, {256 if 'G' in cfg.xp else 216}
          s_cbranch_scc0 {l1}
          s_mul_i32 {S(sFROLE)}, {S(sT)}, {24 if 'G' in cfg.xp else 27}
          s_add_u32 {S(sFROLE)}, {S(sFROLE)}, {S(sT+1)}
          s_cmp_lt_u32 {S(sW)}, 4
          s_cselect_b32 {S(F)}, {S(sPTR+6)}, {S(sPTR+8)}
          s_cselect_b32 {S(F+1)}, {S(sPTR+7)}, {S(sPTR+9)}
          s_mul_i32 {S(sF0)}, {S(sKQ)}, {160*3456}
          s_lshl_b32 {S(sT)}, {S(sFROLE)}, 4
          s_add_u32 {S(sF0)}, {S(sF0)}, {S(sT)}
          s_mov_b32 {S(sFSTEP)}, {32*3456}
          s_add_u32 {S(sFMAX)}, {S(sF0)}, {128*3456}
          s_mov_b32 {S(sEXA)}, 0xffff
          v_lshl_add_u32 v64, v65, 4, v2
          v_mul_u32_u24 {R(vF)}, 3456, v64
          s_branch {lj}
          {l1}:
          s_mul_i32 {S(sFROLE)}, {S(sT)}, 5
          s_sub_u32 {S(sT+1)}, {S(sT+1)}, 27
          s_add_u32 {S(sFROLE)}, {S(sFROLE)}, {S(sT+1)}
          s_mov_b32 {S(F)}, {S(sDNP)}
          s_mov_b32 {S(F+1)}, {S(sDNP+1)}
          s_mul_i32 {S(sF0)}, {S(sW)}, {224*1280}
          s_lshl_b32 {S(sT)}, {S(sFROLE)}, 5
          s_add_u32 {S(sF0)}, {S(sF0)}, {S(sT)}
          s_mov_b32 {S(sFSTEP)}, {32*1280}
          s_add_u32 {S(sFMAX)}, {S(sT)}, {1696*1280}
          s_mov_b32 {S(sEXA)}, -1
          v_lshrrev_b32 v64, 1, v1
          v_mul_u32_u24 v64, 1280, v64
          v_and_b32 v65, 1, v1
          v_lshl_add_u32 {R(vF)}, v65, 4, v64
          {lj}:
          s_bitcmp0_b32 {S(sW)}, 0
          s_cselect_b32 {S(GU)}, {S(sPTR+6)}, {S(sPTR+8)}
          s_cselect_b32 {S(GU+1)}, {S(sPTR+7)}, {S(sPTR+9)}
          s_mov_b32 {S(GU+2)}, {S(F+2)}
          s_mul_i32 {S(sT)}, {S(sTG)}, 81920
          s_add_u32 {S(sT)}, {S(sT)}, {W_O}
          s_mul_i32 {S(sOST)}, {S(sHG)}, 10240
          s_lshl_b32 {S(sT+1)}, {S(sW)}, 7
          s_add_u32 {S(sOST)}, {S(sOST)}, {S(sT+1)}
          s_add_u32 {S(sOST)}, {S(sOST)}, {S(sT)}
          s_lshl_b32 {S(sOLD)}, {S(sTH)}, 1
          s_and_b32 {S(sT+1)}, {S(sW)}, 1
          s_add_u32 {S(sOLD)}, {S(sOLD)}, {S(sT+1)}
          s_mul_i32 {S(sOLD)}, {S(sOLD)}, 20480
          s_lshl_b32 {S(sT+1)}, {S(sKQ)}, 8
          s_add_u32 {S(sOLD)}, {S(sOLD)}, {S(sT+1)}
          s_add_u32 {S(sOLD)}, {S(sOLD)}, {S(sT)}
          s_lshl_b32 {S(sT)}, {S(sTG)}, 2
          s_add_u32 {S(sT)}, {S(sT)}, {S(sKQ)}
          s_mul_i32 {S(sXO)}, {S(sT)}, {16*1280}
          s_add_u32 {S(sXO)}, {S(sXO)}, {S(sWOFF)}""")
    stamp("setup")
    SEL = 34
    def sel_build(t):
        for i in range(3): a(f"v_lshlrev_b32 {R(MCL+i)}, 16, {R(MCL+i)}")
        for i in range(3): a(f"v_mul_f32 v{t+i}, {hex(fbits(-LOG2E))}, {R(MCL+i)}")
        for i in range(3): a(f"v_exp_f32 v{t+i}, v{t+i}")
        for i in range(3): a(f"v_add_f32 v{t+i}, 1.0, v{t+i}")
        for i in range(3): a(f"v_rcp_f32 v{t+i}, v{t+i}")
        for i in range(3): a(f"v_mul_f32 v{t+i}, v{t+i}, {R(MCL+i)}")
        a(f"v_and_b32 v{t+3}, 1, v1\nv_lshlrev_b32 v{t+3}, 4, v{t+3}\ns_sub_u32 {S(sT+2)}, {S(sTH)}, 1")
        for i in range(3): a(f"v_cvt_pk_bf16_f32 v{t+i}, v{t+i}, 0")
        for i in range(3): a(f"v_lshlrev_b32 v{t+i}, v{t+3}, v{t+i}")
        a(f"v_and_b32 v{t+2}, {S(sT+2)}, v{t+2}\nv_bfe_u32 v{t+3}, v1, 1, 2")
        for m in range(4):
            a(f"v_xor_b32 {R(MCL)}, {m}, v{t+3}\nv_subrev_u32 {R(MCL)}, 1, {R(MCL)}\nv_ashrrev_i32 {R(MCL)}, 31, {R(MCL)}")
            for i in range(3): a(f"v_and_b32 {R(SEL+4*i+m)}, {R(MCL)}, v{t+i}")
    def row_stats():
        a(f"""s_mov_b32 {S(sT+2)}, 0x3f803f80
              v_dot2_f32_bf16 v110, v104, {S(sT+2)}, 0
              v_dot2_f32_bf16 v111, v104, v104, 0""")
        for m in range(1, 5): a(f"v_dot2_f32_bf16 v110, v{104+m}, {S(sT+2)}, v110\nv_dot2_f32_bf16 v111, v{104+m}, v{104+m}, v111")
        a("s_nop 2")
        for rot in (8, 4, 2, 1):
            for k in range(2): a(f"v_add_f32_dpp v{110+k}, v{110+k}, v{110+k} row_ror:{rot} row_mask:0xf bank_mask:0xf")
            a("s_nop 0")
        for sw in ("32", "16"):
            a("v_mov_b32 v104, v110\nv_mov_b32 v105, v111\ns_nop 1")
            a(f"v_permlane{sw}_swap_b32 v110, v104\nv_permlane{sw}_swap_b32 v111, v105\nv_add_f32 v110, v110, v104\nv_add_f32 v111, v111, v105")
        a(f"""v_mul_f32 v110, {hex(fbits(1/640))}, v110
              v_mul_f32 v111, {hex(fbits(1/640))}, v111
              v_fma_f32 v111, -v110, v110, v111
              v_max_f32 v111, 0, v111
              v_add_f32 v111, {hex(fbits(1e-5))}, v111
              v_rsq_f32 v111, v111
              s_lshl_b32 {S(sT+2)}, {S(sW)}, 3
              s_add_u32 {S(sT+2)}, {S(sT+2)}, {L_ST}
              v_mul_f32 v110, v110, v111
              v_mov_b32 v109, {S(sT+2)}
              s_mov_b64 exec, 1
              ds_write_b64 v109, v[110:111]
              s_mov_b64 exec, -1""")
    WBQ = [128 + 4*i for i in range(10)] + [176 + 4*i for i in range(15)]
    def qread(n):
        m, j = divmod(n, 5)
        for u in range(2):
            a.lds(f"ds_read_b64_tr_b16 {R(WBQ[n]+2*u,2)}, {R(aW+u+2*(m//3))} offset:{L_WQ + 20480*(m%3) + 8*j}", ("wf", n))
    def wq_dma(i0, i1, t):
        for i in range(i0, i1):
            l = if_wave("lt", 4) if i == 12 else None
            a(f"s_lshl_b32 {S(t)}, {S(sW)}, 10\ns_add_u32 m0, {S(t)}, {L_WQ + 8192*i}\ns_add_u32 {S(t)}, {S(sWOFF)}, {256*1280*(i//5)}")
            a(f"buffer_load_dwordx4 {R(WOA+i%5)}, {S(WQ,4)}, {S(t)} offen lds")
            if l: a(f"{l}:")
    L_kv = a.label("bkv"); L_w0 = a.label("w0"); L_d = a.label("dma2")
    if_s(sW, "ge", 1, L_w0)
    if_s(sW, "lt", 6, L_d)

    KVW, PH, MV, HP, HB, KVA = 208, 8, 80, 112, 80, 96
    a(f"""s_sub_u32 {S(sT+8)}, {S(sW)}, 1
          s_mul_i32 {S(sT)}, {S(sT+8)}, 5120
          s_mul_i32 {S(sT+9)}, {S(sT+8)}, 10240
          s_add_u32 {S(sT+9)}, {S(sT+9)}, {L_SCR}
          s_lshl_b32 {S(sT+2)}, {S(sTG)}, 3
          s_add_u32 {S(sT+2)}, {S(sT+2)}, {S(sHG)}
          s_mul_i32 {S(sT+2)}, {S(sT+2)}, 10240
          s_lshl_b32 {S(sT+1)}, {S(sT+8)}, 8
          s_add_u32 {S(sT+2)}, {S(sT+2)}, {S(sT+1)}
          v_and_b32 v10, 7, v1
          v_mul_u32_u24 v10, 1280, v10
          v_lshrrev_b32 v11, 3, v1
          v_lshl_add_u32 v10, v11, 4, v10
          s_add_u32 {S(sT+1)}, {S(sT)}, 4096""")
    a.c("lane (token = l&7, piece = l>>3); this wave's rows of wk / wv -> private LDS image")
    for i in range(2): a(f"buffer_load_dwordx4 {R(XR+8+4*i,4)}, v10, {S(X,4)}, {S(sT+2)} offen offset:{128*i}")
    for mtx, srd_ in enumerate((WK, WV)):
        a(f"s_add_u32 m0, {S(sT+9)}, {5120*mtx}\ns_nop 0")
        for i in range(4): a(f"buffer_load_dwordx4 {R(vK16)}, {S(srd_,4)}, {S(sT)} offen offset:{1024*i} lds")
        a(f"s_add_u32 m0, {S(sT+9)}, {5120*mtx + 4096}\ns_nop 0\nbuffer_load_dwordx4 {R(vK16)}, {S(srd_,4)}, {S(sT+1)} offen lds")
    if cfg.qtouch:
        a.c("second warm-up level: per-die share of wq, 40 lines per wave")
        a(f"""s_lshr_b32 {S(sT+2)}, {S(sB)}, 3
              s_mul_i32 {S(sT+2)}, {S(sT+2)}, 25600
              s_add_u32 {S(sT+2)}, {S(sT+2)}, {S(sT)}
              v_lshlrev_b32 v10, 7, v1
              s_mov_b32 exec_hi, 0xff
              buffer_load_dword v27, v10, {S(WQ,4)}, {S(sT+2)} offen
              s_mov_b32 exec_hi, -1""")
    nt = 1 if cfg.qtouch else 0
    a.c("wk / wv fragments for this wave's four k-steps: K 0..15, V 0..15, then [K 16..19 | V 16..19]")
    a(f"""v_bfe_u32 v80, v1, 2, 2
          v_bfe_u32 v81, v1, 4, 1
          v_lshl_add_u32 v80, v81, 2, v80
          v_lshl_add_u32 v80, v3, 3, v80
          v_xor_b32 v81, 4, v80
          v_mul_u32_u24 v80, 40, v80
          v_mul_u32_u24 v81, 40, v81
          v_and_b32 v82, 3, v1
          v_lshlrev_b32 v83, 3, v82
          v_and_b32 v82, 1, v1
          v_mul_u32_u24 v82, 5120, v82
          v_add3_u32 v84, v80, v83, {S(sT+9)}
          v_add3_u32 v85, v81, v83, {S(sT+9)}
          v_add3_u32 v86, v80, v82, {S(sT+9)}
          v_add3_u32 v87, v81, v82, {S(sT+9)}
""")
    aP, aMW, aMR, aHW, aHR, aKP, vHS = 120, 121, 122, 124, 125, 126, 24
    a(f"""v_and_b32 v80, 31, v1
          v_lshrrev_b32 v81, 5, v1
          v_mul_u32_u24 v82, 2560, v81
          v_lshl_add_u32 {R(aP)}, v80, 4, v82
          v_add_u32 {R(aMW)}, {S(sT+9)}, {R(vK16)}
          v_cvt_f32_u32 v25, v81
          v_lshrrev_b32 v80, 3, v1
          v_and_b32 v81, 7, v1
          v_and_b32 v82, 1, v80
          v_lshlrev_b32 v82, 4, v82
          v_lshl_add_u32 v82, v80, 5, v82
          v_add_u32 {R(aMR)}, {S(sT+9)}, v82
          v_xor_b32 {R(aMR+1)}, 16, {R(aMR)}
          v_lshlrev_b32 v81, 4, v81
          v_lshl_add_u32 {R(vHS)}, v80, 10, v81
          v_lshlrev_b32 v82, 7, v3
          v_add3_u32 {R(aHR)}, v82, v81, {S(sT+9)}
          s_lshl_b32 {S(sT)}, {S(sT+8)}, 9
          s_add_u32 {S(sT)}, {S(sT)}, {L_CKP}
          v_lshl_add_u32 {R(aHW)}, v1, 2, {S(sT)}
          s_mul_i32 {S(sT)}, {S(sT+8)}, 1280
          s_add_u32 {S(sT)}, {S(sT)}, {L_KVP}
          v_mul_u32_u24 v80, 80, v2
          v_lshlrev_b32 v81, 4, v3
          v_add3_u32 {R(aKP)}, v80, v81, {S(sT)}
          v_lshlrev_b32 v80, 5, v2
          v_add3_u32 {R(aKP+1)}, v80, v81, {S(sT)}
          v_lshlrev_b32 v26, 2, v1
          s_lshl_b32 {S(sT)}, {S(sT+8)}, 9
          s_add_u32 {S(sT+4)}, {S(sT)}, {W_MODP}
          s_add_u32 {S(sT+5)}, {S(sT+4)}, 15360
          s_add_u32 {S(sT+6)}, {S(sT+5)}, 15360
          s_add_u32 {S(sT+7)}, {S(sT+6)}, 15360
          s_mul_i32 {S(sT)}, {S(sTG)}, 81920
          s_lshl_b32 {S(sT+1)}, {S(sT+8)}, 14
          s_add_u32 {S(sT)}, {S(sT)}, {S(sT+1)}
          s_lshl_b32 {S(sT+1)}, {S(sHG)}, 7
          s_add_u32 {S(sT)}, {S(sT)}, {S(sT+1)}
          s_add_u32 {S(sT)}, {S(sT)}, {W_H}
          s_add_u32 {S(sT+1)}, {S(sT)}, 8192
          s_lshl_b32 {S(sT+3)}, {S(sTG)}, 10
          s_lshl_b32 {S(sT+8)}, {S(sT+8)}, 2
          s_add_u32 {S(sT+3)}, {S(sT+3)}, {S(sT+8)}
          s_lshl_b32 {S(sT+8)}, {S(sHG)}, 7
          s_add_u32 {S(sT+3)}, {S(sT+3)}, {S(sT+8)}
          s_add_u32 {S(sT+3)}, {S(sT+3)}, {W_RDY}
          v_and_b32 v80, 7, v1
          v_lshlrev_b32 v80, 3, v80
          v_add_u32 v80, {L_ST}, v80
          s_waitcnt vmcnt({12 + nt})""")
    stamp("xarr")
    row_stats()
    tag_from_epoch(); tag_bytes()
    wq_dma(0, cfg.qsplit, sT+2)
    def prep():
        a.c("odd pieces carry their upper four channels first")
        a(f"s_mov_b32 {S(sT+8)}, 0xff00ff00\ns_mov_b32 {S(sT+9)}, 0xff00ff00")
        for st in range(4):
            for t in range(3):
                for u in range(2):
                    areg, off = (84 + u, 5120*t) if t < 2 else (86 + u, 32)
                    a.lds(f"ds_read_b64_tr_b16 {R(KVW+12*st+4*t+2*u,2)}, v{areg} offset:{1280*st + off}")
        for m in range(8): a(f"v_cndmask_b32 v{96+m}, {R(XR+8+m)}, {R(XR+8+(m^2))}, {S(sT+8,2)}")
        for m in range(8): a(f"v_lshlrev_b32 {R(XN+2*m)}, 16, v{96+m}\nv_and_b32 {R(XN+2*m+1)}, 0xffff0000, v{96+m}")
    l = if_wave("lt", 4)
    a(f"s_waitcnt vmcnt({nt + cfg.qsplit})")
    a.lg = [None]
    prep()
    a(f"{l}:\ns_setprio 2\nv_mov_b32 v63, {S(sTAG)}")
    stamp("poll0")
    def h1loads():
        for k in range(4): a(f"buffer_load_dwordx4 {R(PH+4*k,4)}, {R(aP)}, {S(WS,4)}, {S(sT+4+k)} offen sc1")
    a.barrier()
    stamp("Bw")
    a.lds("ds_read_b64 v[82:83], v80", "st")
    if cfg.sl1: a(f"s_sleep {cfg.sl1}")
    h1loads()
    l = if_wave("ge", 4)
    a(f"s_waitcnt vmcnt({nt + cfg.qsplit + 4})")
    prep()
    a(f"{l}:")
    a.lg0()
    for m in range(8):
        a(f"v_pk_fma_f32 {R(XN+2*m,2)}, {R(XN+2*m,2)}, v[82:83], v[82:83] op_sel:[0,1,0] op_sel_hi:[1,1,0] neg_lo:[0,0,1] neg_hi:[0,0,1]")
    a(f"s_waitcnt vmcnt({cfg.qs3 - cfg.qsplit})")
    tagcheck(PH, 27)
    a("s_cbranch_vccnz L_h1retry\nL_h1ok:")
    stamp("h1ok")
    sum4_round(PH, "v25")
    a.lg0()
    a(f"ds_write_b128 {R(aMW)}, {R(PH,4)}")
    for i in range(2):
        for vec in (1, 0):
            for u in range(2): a(f"ds_read_b128 {R(MV+16*i+8*(1-vec)+4*u,4)}, {R(aMR+u)} offset:{512*vec + 256*i}")
    for i in range(2):
        a(f"s_waitcnt lgkmcnt({4*(1-i)})")
        for m in range(4): a(f"v_pk_fma_f32 {R(XN+8*i+2*m,2)}, {R(XN+8*i+2*m,2)}, {R(MV+16*i+2*m,2)}, {R(MV+16*i+8+2*m,2)}")
        for m in range(4): a(f"v_cvt_pk_bf16_f32 {R(HP+4*i+m)}, {R(XN+8*i+2*m)}, {R(XN+8*i+2*m+1)}")
        a(f"buffer_store_dwordx4 {R(HP+4*i,4)}, {R(vHS)}, {S(WS,4)}, {S(sT+i)} offen sc1")
    a(f"""s_mov_b64 exec, 1
          buffer_store_dword v63, v26, {S(WS,4)}, {S(sT+3)} offen sc1
          s_mov_b64 exec, -1
          ds_write_b128 {R(aMW)}, {R(HP,4)} offset:1024
          ds_write_b128 {R(aMW)}, {R(HP+4,4)} offset:2048""")
    stamp("hpub")
    if cfg.bh: a("s_barrier")
    for st in range(4): a(f"ds_read_b128 {R(HB+4*st,4)}, {R(aHR)} offset:{1024 + 512*st}")
    a(f"""v_add3_u32 v27, {R(HP)}, {R(HP+1)}, {R(HP+2)}
          v_add3_u32 v25, {R(HP+4)}, {R(HP+5)}, {R(HP+6)}
          v_add_u32 v27, v27, {R(HP+3)}
          v_add_u32 v25, v25, {R(HP+7)}""")
    for st in range(4):
        a(f"s_waitcnt lgkmcnt({3-st})")
        w_, h_ = lambda t: R(KVW+12*st+4*t,4), R(HB+4*st,4)
        for d, (x, y) in enumerate(((w_(0), h_), (w_(2), h_), (h_, w_(1)), (h_, w_(2)))):
            a(f"v_mfma_f32_16x16x32_bf16 {R(KVA+4*d,4)}, {x}, {y}, {'0' if st == 0 else R(KVA+4*d,4)}")
    a(f"""ds_write2st64_b32 {R(aHW)}, v27, v25 offset0:0 offset1:1
          s_mov_b32 exec_lo, 0x00ff00ff
          s_mov_b32 exec_hi, 0x00ff00ff
          s_nop 1
          ds_write_b128 {R(aKP)}, {R(KVA,4)}
          s_mov_b64 exec, 0xff
          ds_write_b128 {R(aKP)}, {R(KVA+4,4)} offset:64
          s_mov_b32 exec_lo, -1
          ds_write_b128 {R(aKP+1)}, {R(KVA+8,4)} offset:640
          s_mov_b32 exec_lo, 0x00f000f0
          ds_write_b128 {R(aKP+1)}, {R(KVA+12,4)} offset:{640+384}
          s_mov_b64 exec, -1
          s_setprio 0
          s_branch {L_kv}""")

    a(f"{L_w0}:")
    l = if_s(sB, "lt", 160)
    a.vm = ["c"] + [("wm", i) for i in range(10)] + ["warm"] * (4 if cfg.xat == 0 else 6)
    mod_silu(MC, MLO, MHI)
    tag_from_epoch()
    mod_dot(MWE, MLO, MHI, 64, 72, sT+9)
    stamp("modpub")
    a(f"s_setprio 0\n{l}:\nv_mov_b32 v80, {L_CNT}\nv_mov_b32 v81, 0\nds_write_b32 v80, v81")
    a("v_mov_b32 v112, 0\ns_waitcnt vmcnt(0)")
    row_stats()
    a.barrier()
    tag_from_epoch(); tag_bytes()
    def hint_addr():
        a(f"""v_lshrrev_b32 v112, 3, v1
              v_and_b32 v113, 7, v1
              v_min_u32 v113, 4, v113
              v_lshlrev_b32 v112, 7, v112
              v_lshl_add_u32 v112, v113, 2, v112
              s_lshl_b32 {S(sT+2)}, {S(sTG)}, 10
              s_add_u32 {S(sT+2)}, {S(sT+2)}, {W_RDY}""")
    hint_ld = f"buffer_load_dword v113, v112, {S(WS,4)}, {S(sT+2)} offen sc1"
    hint_addr()
    if cfg.bh: a(f"s_barrier\ns_sleep {cfg.bh}\n{hint_ld}")
    a(f"s_branch {L_kv}")

    a(f"""{L_d}:
          s_and_b32 {S(sT)}, {S(sW)}, 1
          s_lshl_b32 {S(sT+1)}, {S(sT)}, 6
          v_add_u32 v69, {S(sT+1)}, v1
          s_lshl_b32 {S(sT+1)}, {S(sT)}, 10
          s_mov_b32 {S(sT)}, {S(sWOFF)}""")
    for j in range(5):
        div10(69, 70, 71)
        a(f"v_mul_u32_u24 v70, 1280, v70\nv_lshl_add_u32 v{64+j}, v71, 4, v70")
        if j < 4: a("v_add_u32 v69, 128, v69")
    def qloop(n, thr=None):
        if n == 0: return
        lp = a.label("qloop")
        a(f"s_add_u32 {S(sT+3)}, {S(sT)}, {n*64*1280}\n{lp}:")
        for j in range(5):
            a(f"s_mov_b32 m0, {S(sT+1)}\ns_addk_i32 {S(sT+1)}, 2048\nbuffer_load_dwordx4 v{64+j}, {S(WQ,4)}, {S(sT)} offen lds")
            if thr is not None: a(f"s_waitcnt vmcnt({thr})")
        a(f"s_add_u32 {S(sT)}, {S(sT)}, {64*1280}\ns_cmp_lt_u32 {S(sT)}, {S(sT+3)}\ns_cbranch_scc1 {lp}")
    a("s_setprio 0")
    qloop(cfg.ql[0])
    a(f"s_waitcnt vmcnt({5*cfg.ql[0]})")
    row_stats()
    qloop(cfg.ql[1])
    stamp("dmaw")
    a.barrier()
    if cfg.qsl: a(f"s_sleep {cfg.qsl}")
    qloop(10 - cfg.ql[0] - cfg.ql[1], cfg.qthr)
    stamp("dmae")
    tag_from_epoch(); tag_bytes()
    l = if_wave("eq", 7)
    a(f"""v_mov_b32 v20, -1
          v_mov_b32 v21, -1
          v_mov_b32 v22, -1
          v_mov_b32 v23, -1
          s_lshl_b32 {S(sT)}, {S(sB)}, 10
          s_add_u32 {S(sT+1)}, {S(sT)}, {W_STATS}
          buffer_store_dwordx4 v[20:23], {R(vK16)}, {S(WS,4)}, {S(sT+1)} offen sc1""")
    if_s(sB, "lt", (W_PF - W_CAND)//1024, l)
    a(f"""s_add_u32 {S(sT+1)}, {S(sT)}, {W_CAND}
          buffer_store_dwordx4 v[20:23], {R(vK16)}, {S(WS,4)}, {S(sT+1)} offen sc1
          {l}:""")
    a(f"""v_mul_u32_u24 v112, 52, v1
          v_lshrrev_b32 v112, 8, v112
          v_mul_u32_u24 v113, 5, v112
          v_sub_u32 v113, v1, v113
          s_and_b32 {S(sT)}, {S(sHG)}, 3
          s_lshl_b32 {S(sT)}, {S(sT)}, 3
          v_add_u32 v112, {S(sT)}, v112
          s_lshr_b32 {S(sT)}, {S(sHG)}, 2
          s_mul_i32 {S(sT+1)}, {S(sT)}, {KVT}
          v_lshrrev_b32 v114, 1, v113
          v_lshl_add_u32 v114, v114, 5, v112
          v_and_b32 v115, 1, v113
          v_lshlrev_b32 v115, 3, v115
          v_lshl_add_u32 v114, v114, 4, v115
          v_add_u32 v114, {S(sT+1)}, v114
          s_lshl_b32 {S(sT)}, {S(sT)}, 8
          s_add_u32 {S(sT)}, {S(sT)}, 2560
          v_cmp_eq_u32 vcc, 4, v113
          v_lshl_add_u32 v112, v112, 3, {S(sT)}
          s_mul_i32 {S(sT+4)}, {S(sTG)}, {2*KVT}
          v_cndmask_b32 v112, v114, v112, vcc
          s_add_u32 {S(sT+4)}, {S(sT+4)}, {W_KV}
          s_bfe_u32 {S(sT)}, {S(sHG)}, 0x10001
          s_mul_i32 {S(sT)}, {S(sT)}, 768
          s_add_u32 {S(sT+5)}, {S(sT+4)}, {S(sT+1)}
          s_add_u32 {S(sT+5)}, {S(sT+5)}, {S(sT)}
          s_and_b32 {S(sT)}, {S(sHG)}, 1
          s_mul_i32 {S(sT+6)}, {S(sT)}, 0x300
          s_or_b32 {S(sT+6)}, {S(sT+6)}, 0xff
          s_mul_i32 {S(sT)}, {S(sT)}, 320
          s_add_u32 {S(sT+5)}, {S(sT+5)}, {S(sT)}
          s_add_u32 {S(sT+5)}, {S(sT+5)}, 1024
          v_add_u32 v113, {L_KVP}, {R(vK16)}
          v_mov_b32 v116, 0x3f803f80
          v_mov_b32 v117, 0x3f803f80
          {"s_barrier" if cfg.bh else ""}
          s_waitcnt vmcnt(0)
          {L_kv}:""")
    a.barrier()
    stamp("Bkv")

    HQ, CK, ACQ, ACP = 64, 124, 8, 104
    a(f"""s_mov_b32 {S(DN)}, {S(sDNP)}
          s_mov_b32 {S(DN+1)}, {S(sDNP+1)}
          s_mov_b32 {S(DN+2)}, {S(F+2)}
          s_and_b32 {S(sT+3)}, {S(sW)}, 1
          s_mul_i32 {S(sT+8)}, {S(sTG)}, 81920
          s_lshl_b32 {S(sT)}, {S(sTH)}, 12
          s_lshl_b32 {S(sT+1)}, {S(sKQ)}, 8
          s_add_u32 {S(sT)}, {S(sT)}, {S(sT+1)}
          s_lshl_b32 {S(sT+1)}, {S(sT+3)}, 13
          s_add_u32 {S(sT)}, {S(sT)}, {S(sT+1)}
          s_add_u32 {S(sT+8)}, {S(sT+8)}, {S(sT)}
          s_add_u32 {S(sT+8)}, {S(sT+8)}, {W_H}
          s_lshl_b32 {S(sT+9)}, {S(sTG)}, 12
          s_lshl_b32 {S(sT)}, {S(sTH)}, 7
          s_and_b32 {S(sT+1)}, {S(sKQ)}, 2
          s_lshl_b32 {S(sT+1)}, {S(sT+1)}, 10
          s_add_u32 {S(sT)}, {S(sT)}, {S(sT+1)}
          s_lshl_b32 {S(sT+1)}, {S(sT+3)}, 8
          s_add_u32 {S(sT)}, {S(sT)}, {S(sT+1)}
          s_add_u32 {S(sT+9)}, {S(sT+9)}, {S(sT)}
          s_add_u32 {S(sT+9)}, {S(sT+9)}, {W_CK}
          s_xor_b32 {S(sT+3)}, {S(sT+8)}, 256
          s_lshl_b32 {S(sT+7)}, {S(sTAG)}, 1""")
    def part_addr(base, vfirst, vown):
        a(f"""s_xor_b32 {S(sT)}, {S(sKQ)}, 1
              s_mul_i32 {S(sT)}, {S(sT)}, 3
              s_add_u32 {S(sT)}, {S(sT)}, {S(sTH)}
              s_mul_i32 {S(sT)}, {S(sT)}, 5120
              s_add_u32 {S(sT)}, {S(sT)}, {base + 5120}
              v_add_u32 {R(vfirst)}, {S(sT)}, {R(vK16)}
              s_mul_i32 {S(sT)}, {S(sKQ)}, 15360
              s_add_u32 {S(sT)}, {S(sT)}, {base}
              v_add_u32 {R(vown)}, {S(sT)}, {R(vK16)}""")
    def hload(st):
        if st < 10: return f"s_add_u32 {S(sT)}, {S(sT+3 if st < 5 else sT+8)}, {16384*(st%5)}\nbuffer_load_dwordx4 {R(HQ+4*st,4)}, {R(vOL)}, {S(WS,4)}, {S(sT)} offen sc1"
        return f"buffer_load_dword {R(CK+st-10)}, {R(vCK)}, {S(WS,4)}, {S(sT+9)} offen offset:{1024*(st-10)} sc1"
    def hloads_q(n=12):
        for st in range(n): a(hload(st))
    def hsum(st):
        h = HQ + 4*st
        return [f"v_add3_u32 v126, {R(h)}, {R(h+1)}, {S(sT+7) if st == 0 else 'v126'}", f"v_add3_u32 v126, v126, {R(h+2)}, {R(h+3)}"]
    def hcmp(): a(f"v_add_u32 {R(CK)}, {R(CK)}, {R(CK+1)}\nv_cmp_ne_u32 vcc, v126, {R(CK)}")
    def qstep(st, fill=()):
        fill = list(fill)
        for j in range(5):
            acc = (ACP if st < 5 else ACQ) + 4*j
            a(f"v_mfma_f32_16x16x32_bf16 {R(acc,4)}, {R(WBQ[5*(st%5)+j],4)}, {R(HQ+4*st,4)}, {'0' if st % 5 == 0 else R(acc,4)}")
            for x in fill[len(fill)*j//5 : len(fill)*(j+1)//5]: a(x)
    qfirst = [f"ds_write_b128 v127, {R(ACP+4*j,4)} offset:{1024*j}" for j in range(5)]
    D = cfg.depth
    O_, SB, QA, QB, FR = 64, [192, 224], 8, 24, 28
    KA = [128 + 4*i for i in range(D)]
    VV = [140 + 8*i for i in range(D)]
    NKB = D // 2 + 1
    KB = [164 + 2*i for i in range(NKB)]
    sld = cfg.sld
    def ldk(t): a.vmem(f"buffer_load_dwordx4 {R(KA[t%D],4)}, {R(vK16)}, {S(WS,4)}, {S(sKT+t)} offen {sld}", ("k", t))
    def ldb(p): a.vmem(f"buffer_load_dwordx2 {R(KB[p%NKB],2)}, {R(vK8)}, {S(WS,4)}, {S(sKT+2*p)} offen offset:2560 {sld}", ("b", p))
    def ldv(t):
        for i in range(2): a.vmem(f"buffer_load_dwordx4 {R(VV[t%D]+4*i,4)}, {R(vV)}, {S(WS,4)}, {S(sKT+t)} offen offset:{1024+768*i} {sld}", ("v", t))
    def kv_first():
        a.vm = []
        ldb(0); ldk(0); ldv(0)
    def h2loads():
        for k in range(4):
            a(f"buffer_load_dword v{64+k}, v68, {S(WS,4)}, {S(sT+4+k//2)} offen offset:{2048*(k&1)} sc1")
    def h2check():
        a("s_waitcnt vmcnt(0)")
        for k in range(4): a(f"v_xor_b32 v{64+k}, {S(sTAG)}, v{64+k}")
        a("v_or3_b32 v64, v64, v65, v66\nv_or_b32 v64, v64, v67\nv_cmp_ne_u32 vcc, 0, v64")
    l = if_wave("eq", 7)
    a("s_setprio 3\ns_mov_b32 exec_hi, 0xff")
    for r in range(2):
        for v in range(5): a(f"ds_read_b128 {R(64+20*r+4*v,4)}, v113 offset:{1280*v + 640*r}")
    for r in range(2):
        p = 64 + 20*r
        a(f"s_waitcnt lgkmcnt({5*(1-r)})")
        for m in range(2):
            a(f"""v_pk_add_f32 {R(p+2*m,2)}, {R(p+2*m,2)}, {R(p+4+2*m,2)}
                  v_pk_add_f32 {R(p+8+2*m,2)}, {R(p+8+2*m,2)}, {R(p+12+2*m,2)}""")
        for m in range(2): a(f"v_pk_add_f32 {R(p+2*m,2)}, {R(p+2*m,2)}, {R(p+16+2*m,2)}")
        for m in range(2): a(f"v_pk_add_f32 {R(p+2*m,2)}, {R(p+2*m,2)}, {R(p+8+2*m,2)}")
        if r == 0:
            for m in range(4): a(f"v_mul_f32 {R(p+m)}, {hex(fbits(KSCALE))}, {R(p+m)}")
        for m in range(2): a(f"v_cvt_pk_bf16_f32 v{114+2*r+m}, {R(p+2*m)}, {R(p+2*m+1)}")
        if r == 0: a(f"buffer_store_dwordx2 v[114:115], v112, {S(WS,4)}, {S(sT+4)} offen sc1")
        else: a(f"s_mov_b32 exec_hi, {S(sT+6)}\nbuffer_store_dwordx2 v[116:117], {R(vK8)}, {S(WS,4)}, {S(sT+5)} offen sc1")
    a(f"s_mov_b32 exec_hi, -1\n{l}:")
    l = if_wave("eq", 6)
    a(f"v_add_u32 v113, {L_CKP}, {R(vK8)}")
    for v in range(5): a(f"ds_read_b64 v[{64+2*v}:{65+2*v}], v113 offset:{512*v}")
    a(f"""s_lshl_b32 {S(sT)}, {S(sTG)}, 12
          s_lshl_b32 {S(sT+1)}, {S(sHG)}, 9
          s_add_u32 {S(sT)}, {S(sT)}, {S(sT+1)}
          s_add_u32 {S(sT)}, {S(sT)}, {W_CK}
          s_waitcnt lgkmcnt(0)
          v_add3_u32 v114, v64, v66, {S(sTAG)}
          v_add3_u32 v115, v65, v67, {S(sTAG)}
          v_add3_u32 v68, v68, v70, v72
          v_add3_u32 v69, v69, v71, v73
          v_add_u32 v114, v114, v68
          v_add_u32 v115, v115, v69
          buffer_store_dwordx2 v[114:115], {R(vK8)}, {S(WS,4)}, {S(sT)} offen sc1
          {l}:""")
    a.c("timing hint only: start the gather once all eight workgroups have issued their stores; the check words decide validity")
    l = if_wave("eq", 0)
    a(f"{hint_ld}\n{l}:")
    a.lg = []
    for n in range(25): qread(n)
    part_addr(L_QP, 127, 63)
    l = if_wave("eq", 0)
    a(f"s_waitcnt vmcnt(0)\nv_cmp_ne_u32 vcc, {S(sTAG)}, v113\ns_cbranch_vccz {l}")
    sp = spin_begin()
    a(f"{hint_ld}\ns_waitcnt vmcnt(0)\nv_cmp_ne_u32 vcc, {S(sTAG)}, v113")
    spin_end(sp)
    a(f"{l}:")
    a.barrier()
    stamp("Bg")
    L_qy = a.label("qyoung"); L_q = a.label("qdone")
    LQ = cfg.laq
    hloads_q(LQ)
    sel_build(236)
    l = if_wave("eq", 7)
    if cfg.diag:
        a(f"""v_mov_b32 v240, s100
              s_lshl_b32 {S(sT)}, {S(sB)}, 2
              s_add_u32 {S(sT)}, {S(sT)}, {W_DBG}
              v_lshlrev_b32 v241, 24, v1
              buffer_store_dword v240, v241, {S(WS,4)}, {S(sT)} offen sc1""")
    a(f"""v_mov_b32 v242, {S(sTAG)}
          s_lshl_b32 {S(sT)}, {S(sB)}, 5
          s_add_u32 {S(sT)}, {S(sT)}, {W_KVF}
          v_lshlrev_b32 v241, 24, v1
          s_waitcnt vmcnt({LQ + 1 if cfg.diag else LQ})
          buffer_store_dword v242, v241, {S(WS,4)}, {S(sT)} offen sc1""")
    stamp("flag")
    a(f"s_setprio 0\n{l}:")
    nis = LQ
    for st in range(8):
        a(f"s_waitcnt vmcnt({nis - 1 - st})")
        more = [hload(k) for k in range(nis, min(12, st + LQ + 1 if st < 6 else 12))]
        nis += len(more)
        wr = {5: ["", ""] + qfirst[:2], 6: qfirst[2:]}.get(st, [])
        qstep(st, more + hsum(st) + wr)
    a("s_waitcnt vmcnt(0)")
    for x in hsum(8) + hsum(9): a(x)
    hcmp()
    a("s_cbranch_vccnz L_hretry\nL_hback:")
    if_s(sW, "lt", 4, L_qy)
    a(f"""v_lshlrev_b32 v68, 5, v1
          s_mov_b32 {S(sT+4)}, {W_KVF}
          s_mov_b32 {S(sT+5)}, {W_KVF+4096}""")
    l = if_wave("eq", 0)
    h2loads()
    a(f"{l}:")
    qstep(8); qstep(9)
    a("s_waitcnt lgkmcnt(0)\ns_barrier\ns_nop 1")
    for j in range(5): a(f"ds_write_b128 v63, {R(ACQ+4*j,4)} offset:{1024*j}")
    stamp("qold")
    l = if_wave("eq", 0)
    h2check()
    a(f"s_cbranch_vccnz L_h2retry\nL_h2ok:\n{l}:")
    a.barrier()
    stamp("Bq")
    kv_first()
    a(f"s_branch {L_q}\n{L_qy}:")
    a.barrier()
    PQ = [236, 64, 104]
    qstep(8, [f"ds_read_b128 {R(PQ[k]+4*j,4)}, v63 offset:{5120*k + 1024*j}" for k in (1, 2) for j in range(5)])
    qstep(9)
    a("s_waitcnt lgkmcnt(0)\ns_barrier")
    for j in range(5): a(f"ds_read_b128 {R(PQ[0]+4*j,4)}, v63 offset:{1024*j}")
    for m in range(10): a(f"v_pk_add_f32 {R(PQ[1]+2*m,2)}, {R(PQ[1]+2*m,2)}, {R(PQ[2]+2*m,2)}")
    for m in range(10): a(f"v_pk_add_f32 {R(ACQ+2*m,2)}, {R(ACQ+2*m,2)}, {R(PQ[1]+2*m,2)}")
    a("s_waitcnt lgkmcnt(0)")
    for m in range(10): a(f"v_pk_add_f32 {R(ACQ+2*m,2)}, {R(ACQ+2*m,2)}, {R(PQ[0]+2*m,2)}")
    for m in range(10): a(f"v_cvt_pk_bf16_f32 v{236+m}, {R(ACQ+2*m)}, {R(ACQ+2*m+1)}")
    a(f"""ds_write_b128 {R(aQS)}, v[236:239]
          ds_write_b128 {R(aQS)}, v[240:243] offset:16
          ds_write_b64 {R(aQS)}, v[244:245] offset:32""")
    kv_first()
    a(f"""{L_q}:
          v_mov_b32 v182, 0
          v_mov_b32 v183, 0
          s_nop 1""")
    for i in range(2): a(f"v_mfma_f32_32x32x4_2b_bf16 {R(O_+32*i,32)}, v[182:183], v[182:183], 0")
    if cfg.prio: a("s_setprio 3")
    a.barrier()
    stamp("B5")

    for p in range(2): a.lds(f"ds_read_b64 {R(QB+2*p,2)}, {R(QAD+4+p)} offset:32")
    for i in range(4): a.lds(f"ds_read_b128 {R(QA+4*i,4)}, {R(QAD+i)}")
    ldk(1)
    wv = a.wvm
    wv([("b", 0), ("k", 0)])
    a(f"""s_waitcnt lgkmcnt(4)
          v_mfma_f32_32x32x4_2b_bf16 {R(SB[0],32)}, {R(KB[0],2)}, {R(QB,2)}, 0 cbsz:1 abid:0""")
    ldv(1)
    a(f"""s_waitcnt lgkmcnt(0)
          s_nop 14
          v_mfma_f32_32x32x16_bf16 {R(SB[0],16)}, {R(KA[0],4)}, {R(QA,4)}, {R(SB[0],16)}
          v_mfma_f32_32x32x16_bf16 {R(SB[0]+16,16)}, {R(KA[0],4)}, {R(QA+4,4)}, {R(SB[0]+16,16)}
          s_nop 10""")
    a.lg = []
    stamp("attn0")
    units = [(t, p) for t in range(16) for p in range(2)]
    NU = len(units)
    PM, vWR, vPF = 176, WOA, WOA + 2
    def pf_load(): return f"buffer_load_dword {R(vPF)}, {R(vPF+1)}, {S(WS,4)}, {S(sT+8)} offen sc1"
    def pm_loads():
        for k in range(4): a(f"buffer_load_dwordx4 {R(PM+4*k,4)}, {R(vK16)}, {S(WS,4)}, {S(sT+4+k)} offen sc1")
    def background(u):
        if u == cfg.p_at and 'P' not in cfg.xp:
            a.c("sentinels over the o lines this wave will write")
            for i in range(4): a(f"v_mov_b32 v{176+i}, -1")
            a.vmem(f"buffer_store_dwordx4 v[176:179], {R(vOS)}, {S(WS,4)}, {S(sOST)} offen sc1", "pois")
            a.vmem(f"buffer_store_dword v176, {R(vOS+1)}, {S(WS,4)}, {S(sOST)} offen sc1", "pois")
        if u in cfg.wo_at and 'W' not in cfg.xp:
            i = cfg.wo_at.index(u)
            a(f"s_lshl_b32 {S(sT+9)}, {S(sW)}, 10\ns_add_u32 m0, {S(sT+9)}, {L_WO + 8192*i}\ns_add_u32 {S(sT+9)}, {S(sWOFF)}, {256*1280*(i//5)}")
            a.vmem(f"buffer_load_dwordx4 {R(WOA+i%5)}, {S(WO,4)}, {S(sT+9)} offen {cfg.wsc} lds", "wo")
        if u == cfg.p_at + 6:
            a.c("flag: sentinels in place, plus this die's id; then keep those lines resident in L2")
            a.wvm("pois")
            a(f"""s_lshl_b32 {S(sT+8)}, {S(sTG)}, 8
                  s_add_u32 {S(sT+8)}, {S(sT+8)}, {W_PF}
                  s_lshl_b32 {S(sT)}, {S(sHG)}, 5
                  s_lshl_b32 {S(sT+1)}, {S(sW)}, 2
                  s_add_u32 {S(sT)}, {S(sT)}, {S(sT+1)}
                  s_add_u32 {S(sT)}, {S(sT)}, {S(sT+8)}
                  v_mov_b32 v180, {S(sPFV)}
                  s_mov_b64 exec, 1""")
            a.vmem(f"buffer_store_dword v180, {R(vK16)}, {S(WS,4)}, {S(sT)} offen sc1", "pf")
            a("s_mov_b64 exec, -1")
        if u == cfg.t_at and 'T' not in cfg.xp:
            a.vmem(f"buffer_load_dword v181, {R(vOS)}, {S(WS,4)}, {S(sOST)} offen sc1", "touch")
            a.vmem(f"buffer_load_dword v182, {R(vOS+1)}, {S(WS,4)}, {S(sOST)} offen sc1", "touch")
        if u == cfg.t_at + 1 and 'T' not in cfg.xp:
            a(f"""s_lshl_b32 {S(sT)}, {S(sTG)}, 13
                  s_lshl_b32 {S(sT+1)}, {S(sHG)}, 10
                  s_add_u32 {S(sT)}, {S(sT)}, {S(sT+1)}
                  s_add_u32 {S(sT)}, {S(sT)}, {W_STATS}""")
            a.vmem(f"buffer_load_dword v183, {R(vK16)}, {S(WS,4)}, {S(sT)} offen sc1", "touch")
        LTD = [28, 46, 188]
        if u in cfg.lt_at:
            i = cfg.lt_at.index(u)
            a(f"s_mov_b32 exec_lo, {S(sLTM)}\ns_mov_b32 exec_hi, {S(sLTM)}")
            a.vmem(f"buffer_load_dwordx4 {R(LTD[i],4)}, v55, {S(WM,4)}, {S(sMSO)} offen {cfg.msc}", "lt")
            a("s_mov_b64 exec, -1")
            if i == 0: a(f"s_add_u32 {S(sMSO)}, {S(sMSO)}, {64*7680}")
            if i == 1: a(f"s_sub_u32 {S(sT)}, {S(sTH)}, 1\ns_and_b32 {S(sT)}, {S(sT)}, {64*7680}\ns_add_u32 {S(sMSO)}, {S(sMSO)}, {S(sT)}")
        if u == cfg.ltm_at:
            a.c("gate columns: per-wave partials to LDS, the last wave to arrive sums and publishes them")
            a.wvm("lt")
            l = if_s(sB, "ge", 96)
            for i in range(3):
                a(f"v_mfma_f32_16x16x32_bf16 v[50:53], {R(SEL+4*i,4)}, {R(LTD[i],4)}, {'0' if i == 0 else 'v[50:53]'}")
            a(f"""v_and_b32 v32, 7, v1
                  v_lshlrev_b32 v32, 5, v32
                  v_and_b32 v33, 1, v3
                  v_lshl_add_u32 v32, v33, 4, v32
                  v_lshrrev_b32 v33, 5, v1
                  v_lshl_add_u32 v32, v33, 8, v32
                  s_lshl_b32 {S(sT)}, {S(sW)}, 9
                  s_add_u32 {S(sT)}, {S(sT)}, {L_LT}
                  v_add_u32 v32, {S(sT)}, v32
                  v_mov_b32 v33, {L_CNT}
                  v_mov_b32 v54, 1
                  s_mov_b32 exec_lo, 0x00ff00ff
                  s_mov_b32 exec_hi, 0xff00ff00
                  ds_write_b128 v32, v[50:53]
                  s_mov_b64 exec, 1
                  s_waitcnt lgkmcnt(0)
                  ds_add_rtn_u32 v54, v33, v54
                  s_mov_b64 exec, -1
                  s_waitcnt lgkmcnt(0)
                  v_readfirstlane_b32 {S(sT)}, v54
                  s_nop 3
                  s_cmp_eq_u32 {S(sT)}, 7
                  s_cbranch_scc0 {l}
                  v_lshlrev_b32 v32, 4, v2
                  v_lshl_add_u32 v33, v3, 8, v32
                  v_add_u32 v33, {L_LT}, v33
                  ds_read_b128 v[34:37], v33
                  ds_read_b128 v[38:41], v33 offset:1024
                  ds_read_b128 v[42:45], v33 offset:2048
                  ds_read_b128 v[46:49], v33 offset:3072
                  v_lshl_add_u32 v32, v3, 2, v32
                  v_lshlrev_b32 v54, 3, v3
                  v_lshrrev_b32 v54, v54, {S(sTAG)}
                  s_movk_i32 {S(sT)}, 0xff
                  s_waitcnt lgkmcnt(0)
                  v_pk_add_f32 v[34:35], v[34:35], v[38:39]
                  v_pk_add_f32 v[36:37], v[36:37], v[40:41]
                  v_pk_add_f32 v[42:43], v[42:43], v[46:47]
                  v_pk_add_f32 v[44:45], v[44:45], v[48:49]
                  v_pk_add_f32 v[34:35], v[34:35], v[42:43]
                  v_pk_add_f32 v[36:37], v[36:37], v[44:45]
                  s_nop 1
                  v_permlane32_swap_b32 v34, v36
                  v_permlane32_swap_b32 v35, v37
                  v_add_f32 v34, v34, v36
                  v_add_f32 v35, v35, v37
                  s_nop 1
                  v_permlane16_swap_b32 v34, v35
                  v_add_f32 v34, v34, v35
                  v_bfi_b32 v187, {S(sT)}, v54, v34
                  buffer_store_dword v187, v32, {S(WS,4)}, {S(sMOUT)} offen sc1
                  {l}:""")
        if u == 15:
            l = if_s(sB, "eq", 0)
            if_s(sW, "eq", 0, l)
            a(f"""v_mov_b32 v184, {S(sTAG)}
                  s_mov_b64 exec, 1
                  buffer_store_dword v184, {R(vK16)}, {S(WS,4)}, 0 offen sc1
                  s_mov_b64 exec, -1
                  {l}:""")
        if u == cfg.late_at:
            lh, lj = a.label("bgh"), a.label("bgj")
            if_s(sW, "ge", 4, lh)
            for k in range(5): a(f"buffer_load_dwordx2 {R(PM+2*k,2)}, {R(vXO)}, {S(X,4)}, {S(sXO)} offen offset:{8*k}")
            a(f"""s_branch {lj}
                  {lh}:
                  s_mul_i32 {S(sT)}, {S(sKQ)}, 2560
                  s_lshl_b32 {S(sT+1)}, {S(sWOFF)}, 1
                  s_add_u32 {S(sT)}, {S(sT)}, {S(sT+1)}
                  s_add_u32 {S(sT+4)}, {S(sT)}, {W_MODP + 5120}
                  s_add_u32 {S(sT+5)}, {S(sT+4)}, 15360
                  s_add_u32 {S(sT+6)}, {S(sT+5)}, 15360
                  s_add_u32 {S(sT+7)}, {S(sT+6)}, 15360
                  s_mov_b64 exec, 0xfffff
                  buffer_load_dwordx2 {R(vWR,2)}, {R(vK8)}, {S(WR,4)}, {S(sWOFF)} offen""")
            pm_loads()
            a(f"s_mov_b64 exec, -1\n{lj}:")
            a.vm += ["late"] * 5
        if u == cfg.late_at + 1:
            a(f"v_lshlrev_b32 {R(vPF+1)}, 2, v1")
            a.vmem(pf_load(), "pfl")
    def f_slot(u):
        for k in range(len(cfg.tch_at)):
            if cfg.tch_at[k] != u or 'X' in cfg.xp: continue
            srd_, sh, mul, add, n = [(WO, 0, 400, 0, 4), (GU, 1, 2160, 0, 9), (GU, 1, 2160, 1152, 9), (DN, 0, 1080, 0, 9)][k]
            if k == 0: a("v_lshlrev_b32 v186, 7, v1")
            a(f"""s_lshl_b32 {S(sT)}, {S(sB)}, 3
                  s_add_u32 {S(sT)}, {S(sT)}, {S(sW)}
                  s_lshr_b32 {S(sT)}, {S(sT)}, {sh}
                  s_mul_i32 {S(sT)}, {S(sT)}, {mul}
                  s_andn2_b32 {S(sT)}, {S(sT)}, 127
                  s_mov_b64 exec, {(1 << n) - 1}""")
            a.vmem(f"buffer_load_dword v185, v186, {S(srd_,4)}, {S(sT)} offen offset:{add}", "tch")
            a("s_mov_b64 exec, -1")
        if u not in cfg.f_at or 'F' in cfg.xp: return
        k = cfg.f_at.index(u)
        a(f"s_mov_b32 exec_lo, {S(sEXA)}\ns_mov_b32 exec_hi, {S(sEXA)}")
        a.vmem(f"buffer_load_dwordx4 {R(FR+4*k,4)}, {R(vF)}, {S(F,4)}, {S(sF0)} offen {cfg.fsc}", "f")
        a(f"s_mov_b64 exec, -1\ns_add_u32 {S(sF0)}, {S(sF0)}, {S(sFSTEP)}\ns_min_u32 {S(sF0)}, {S(sF0)}, {S(sFMAX)}")
    ready = [(3, ldb, 1)] + [x for t in range(2, D) for x in ((2*t - 1, ldk, t), (2*t, ldv, t))]
    def drain(u):
        if u < cfg.quiet: return
        ready.sort(key=lambda x: x[0])
        for need, fn, arg in ready[:2]:
            assert need > u
            fn(arg)
        del ready[:2]
    a.c("main loop: unnormalised exponentials, range-checked afterwards")
    for u, (t, p) in enumerate(units):
        cur = SB[u & 1]; nxt = SB[(u + 1) & 1]
        last = u == NU - 1
        tn, pn = units[min(u + 1, NU - 1)]
        tp, pp = units[u - 1]
        def e(x, y):
            for i in range(x, y): a(f"v_exp_f32 {R(cur+i)}, {R(cur+i)}")
        def sm(o, av, bv): a(f"v_smfmac_f32_32x32x32_bf16 {R(o,16)}, {R(av,4)}, {R(bv,8)}, {R(IDX)}")
        if cfg.prio and p == 0 and t in cfg.prio: a(f"s_setprio {2 - cfg.prio.index(t)}")
        if cfg.only and u % 2 == 0: stamp(f"u{u}")
        e(0, 2)
        if u > 0: sm(O_ + 32*pp + 16, VV[tp % D] + 4, nxt + 24)
        if p == 0 and t > 0 and t + D - 1 < 16: ready.append((2*(t + D - 1), ldv, t + D - 1))
        drain(u)
        if p == 1 and not last: wv([("k", tn), ("b", tn >> 1)])
        e(2, 5)
        if not last: a(f"v_mfma_f32_32x32x4_2b_bf16 {R(nxt,32)}, {R(KB[(tn>>1)%NKB],2)}, {R(QB+2*pn,2)}, 0 cbsz:1 abid:{tn&1}")
        if p == 1 and t + D < 16: ready.append((2*(t + D) - 1, ldk, t + D))
        if p == 1 and (t & 1) and (t >> 1) + NKB < 8: ready.append((4*((t >> 1) + NKB) - 1, ldb, (t >> 1) + NKB))
        drain(u)
        e(5, 13)
        if p == 0: wv([("v", t)])
        sm(O_ + 32*p, VV[t % D], cur)
        e(13, 18)
        sm(O_ + 32*p, VV[t % D] + 4, cur + 8)
        background(u)
        e(18, 21)
        if not last: a(f"v_mfma_f32_32x32x16_bf16 {R(nxt,16)}, {R(KA[tn%D],4)}, {R(QA+8*pn,4)}, {R(nxt,16)}")
        e(21, 25)
        if not last: a(f"v_mfma_f32_32x32x16_bf16 {R(nxt+16,16)}, {R(KA[tn%D],4)}, {R(QA+8*pn+4,4)}, {R(nxt+16,16)}")
        f_slot(u)
        e(25, 28)
        sm(O_ + 32*p + 16, VV[t % D], cur + 16)
        e(28, 32)
    a(f"s_nop 1\nv_smfmac_f32_32x32x32_bf16 {R(O_+48,16)}, {R(VV[15%D]+4,4)}, {R(SB[1]+24,8)}, {R(IDX)}")
    stamp("attn1")

    a.vm0()
    def pf_check():
        a(f"""v_cmp_ne_u32 {S(sT+2,2)}, {S(sPFV)}, {R(vPF)}
              v_xor_b32 v194, {S(sTAG)}, {R(vPF)}
              v_cmp_lt_u32 vcc, 15, v194""")
    pf_check()
    a(f"""s_cbranch_vccnz L_pfretry
          L_pfok:
          s_cmp_eq_u64 {S(sT+2,2)}, 0
          s_cselect_b32 {S(sFAST)}, {0 if 'S' in cfg.xp else 1}, 0""")
    a(f"s_and_b32 {S(sT)}, {S(sW)}, 4")
    for i in (1, 2, 3):
        o = O_ + 16*i; p = 192 + 8*i
        a(f"""s_add_u32 {S(sT+1)}, {S(sW)}, {i}
              s_and_b32 {S(sT+1)}, {S(sT+1)}, 3
              s_or_b32 {S(sT+1)}, {S(sT+1)}, {S(sT)}
              s_mul_i32 {S(sT+1)}, {S(sT+1)}, 4608
              s_add_u32 {S(sT+1)}, {S(sT+1)}, {L_PART + 1536*(i-1)}
              v_add_u32 {R(p+6)}, {S(sT+1)}, {R(vK16)}
              v_add_u32 {R(p+7)}, {S(sT+1)}, {R(vK8)}""")
        for j in range(5): a(f"v_cvt_pk_bf16_f32 {R(p+j)}, {R(o+2*j)}, {R(o+2*j+1)}")
        a(f"v_mov_b32 {R(p+5)}, {R(o+10)}\nds_write_b128 {R(p+6)}, {R(p,4)}\nds_write_b64 {R(p+7)}, {R(p+4,2)} offset:1024")
    a(f"""s_mul_i32 {S(sT+1)}, {S(sW)}, 4608
          s_add_u32 {S(sT+1)}, {S(sT+1)}, {L_PART}
          v_add_u32 v192, {S(sT+1)}, {R(vK16)}
          v_add_u32 v193, {S(sT+1)}, {R(vK8)}
          s_movk_i32 {S(sT)}, 0x3f80
          s_mov_b32 {S(sT+1)}, 0x3f800000
          s_setprio 0""")
    l = if_wave("lt", 4)
    a.c("waves 0..3: ga / sb / cb / gb of this column slice -> LDS")
    a("v_mov_b32 v136, 0\ns_mov_b64 exec, 0xfffff")
    tagcheck(PM, 128)
    a(f"s_cbranch_vccnz L_pmretry\nL_pmok:\ns_cmp_eq_u32 {S(sKQ)}, 2\ns_cselect_b32 {S(sT+2)}, 1.0, 0")
    sum4_round(PM, S(sT+2))
    a(f"""s_mul_i32 {S(sT+2)}, {S(sKQ)}, 320
          s_add_u32 {S(sT+2)}, {S(sT+2)}, {L_MB}
          v_add_u32 v137, {S(sT+2)}, {R(vK16)}
          ds_write_b128 v137, {R(PM,4)}
          v_lshlrev_b32 v128, 16, {R(vWR)}
          v_and_b32 v129, 0xffff0000, {R(vWR)}
          v_lshlrev_b32 v130, 16, {R(vWR+1)}
          v_and_b32 v131, 0xffff0000, {R(vWR+1)}
          v_pk_mul_f32 v[132:133], {R(PM,2)}, v[128:129]
          v_pk_mul_f32 v[134:135], {R(PM+2,2)}, v[130:131]
          v_add_u32 v138, {L_MB + 1280}, {R(vK16)}
          v_add_f32 v136, v132, v133
          v_add_f32 v139, v134, v135
          v_add_f32 v136, v136, v139""")
    l2 = if_s(sKQ, "eq", 2)
    a(f"ds_write_b128 v138, v[132:135]\n{l2}:\ns_mov_b64 exec, -1\ns_nop 1")
    for rot in (8, 4, 2, 1):
        a(f"v_add_f32_dpp v136, v136, v136 row_ror:{rot} row_mask:0xf bank_mask:0xf\ns_nop 1")
    a(f"""v_readlane_b32 {S(sT+2)}, v136, 16
          s_lshl_b32 {S(sT+3)}, {S(sKQ)}, 2
          s_add_u32 {S(sT+3)}, {S(sT+3)}, {L_MB + 1600}
          v_mov_b32 v137, {S(sT+3)}
          v_add_f32 v136, {S(sT+2)}, v136
          s_mov_b64 exec, 1
          ds_write_b32 v137, v136
          s_mov_b64 exec, -1
          {l}:""")
    a(f"s_xor_b32 {S(sT+2)}, {S(sOLD)}, 256")
    for s in range(10): a(f"s_add_u32 {S(sKT+s)}, {S(sT+2 if s < 5 else sOLD)}, {4096*(s%5)}")
    a.barrier()
    stamp("B6")
    for i in range(3):
        a.lds(f"ds_read_b128 {R(96+8*i,4)}, v192 offset:{1536*i}", ("p", i))
        a.lds(f"ds_read_b64 {R(100+8*i,2)}, v193 offset:{1536*i+1024}", ("p", i))
    for i in range(3):
        a.wlg(("p", i))
        for j in range(5):
            a(f"v_dot2c_f32_bf16 {R(O_+2*j)}, {S(sT)}, {R(96+8*i+j)}\nv_dot2c_f32_bf16 {R(O_+2*j+1)}, {S(sT+1)}, {R(96+8*i+j)}")
        a(f"v_add_f32 {R(O_+10)}, {R(O_+10)}, {R(101+8*i)}")
    a.c("range check on the softmax denominator; outside it this wave redoes its tile with the true row maximum")
    lo_lim, hi_lim = (2.0**60, 2.0**-60) if cfg.force_slow else (2.0**-40, 2.0**60)
    a(f"""v_cmp_nle_f32 vcc, {hex(fbits(lo_lim))}, {R(O_+10)}
          s_mov_b64 {S(sT+2,2)}, vcc
          v_cmp_nge_f32 vcc, {hex(fbits(hi_lim))}, {R(O_+10)}
          s_or_b64 vcc, vcc, {S(sT+2,2)}
          s_cbranch_vccnz L_slow
          L_slow_done:
          v_rcp_f32 {R(O_+10)}, {R(O_+10)}
          s_nop 0""")
    for j in range(5): a(f"v_pk_mul_f32 {R(O_+2*j,2)}, {R(O_+2*j,2)}, {R(O_+10,2)} op_sel_hi:[1,0]")
    for j in range(5): a(f"v_cvt_pk_bf16_f32 {R(120+j)}, {R(O_+2*j)}, {R(O_+2*j+1)}")
    def pub(lines):
        l1, l2 = a.label("wt"), a.label("pub")
        if_s(sFAST, "eq", 1, l1)
        for x in lines: a(x)
        a(f"s_branch {l2}\n{l1}:")
        for x in lines: a(x + " sc1")
        a(f"{l2}:")
    pub([f"buffer_store_dwordx4 v[120:123], {R(vOS)}, {S(WS,4)}, {S(sOST)} offen",
         f"buffer_store_dword v124, {R(vOS+1)}, {S(WS,4)}, {S(sOST)} offen"])
    stamp("o_stored")

    OF, ACC, X1 = 64, 104, 8
    WB = [128 + 4*i for i in range(12)] + [192 + 4*i for i in range(13)]
    AF1 = [244, 248, 252, 124, 188]
    def wread(i):
        s5, j = divmod(i, 5)
        for u in range(2):
            if s5 in (0, 1, 3): areg, off = AB, {0: 0, 1: 40, 3: 100}[s5]*160 + 1280*u
            else: areg, off = ((A2a, A2b) if s5 == 2 else (A4a, A4b))[u], 0
            a.lds(f"ds_read_b64_tr_b16 {R(WB[i]+2*u,2)}, {R(areg)} offset:{L_WO + 8*j + off}", ("wf", i))
    def oload(s): a(f"buffer_load_dwordx4 {R(OF+4*s,4)}, {R(vOL)}, {S(WS,4)}, {S(sKT+s)} offen sc1")
    retry = []
    LA = cfg.la
    def ocheck(s):
        r = OF + 4*s
        return [f"s_waitcnt vmcnt({min(9, s - 1 + LA) - s})", f"v_max_u32 v63, {R(r)}, {R(r+1)}",
                f"v_max3_u32 v63, v63, {R(r+2)}, {R(r+3)}", "v_cmp_eq_u32 vcc, -1, v63"]
    def obranch(s):
        lr, lb = a.label("oretry"), a.label("oback")
        a(f"s_cbranch_vccnz {lr}\n{lb}:")
        retry.append((s, lr, lb))
    def ostep(s, fill=()):
        fill = list(fill)
        for j in range(5):
            acc = AF1[j] if s < 5 else ACC + 4*j
            a(f"v_mfma_f32_16x16x32_bf16 {R(acc,4)}, {R(WB[5*(s%5)+j],4)}, {R(OF+4*s,4)}, {'0' if s % 5 == 0 else R(acc,4)}")
            if j == 0 and s + LA < 10: oload(s + LA)
            for x in fill[len(fill)*j//5 : len(fill)*(j+1)//5]: a(x)
            if j == 3 and s < 9:
                for x in ocheck(s + 1): a(x)
        if s < 9: obranch(s + 1)
    def fimage():
        l = if_s(sB, "lt", 216)
        a(f"""s_mul_i32 {S(sT+6)}, {S(sTH)}, {L_FU - L_FG}
              s_mul_i32 {S(sT+7)}, {S(sKQ)}, 2560
              s_add_u32 {S(sT+6)}, {S(sT+6)}, {S(sT+7)}
              v_lshrrev_b32 v124, 5, v1
              v_lshl_add_u32 v124, v124, 4, v2
              v_lshl_add_u32 v124, v124, 4, {S(sT+6)}
              s_mov_b32 exec_lo, 0xffff
              s_mov_b32 exec_hi, 0xffff""")
        for k in range(5): a(f"ds_write_b128 v124, {R(FR+4*k,4)} offset:{L_FG + 512*k}")
        a(f"s_mov_b64 exec, -1\n{l}:")
    for i in range(cfg.npre): wread(i)
    for s in range(LA): oload(s)
    for i in range(cfg.npre, 25): wread(i)
    part_addr(L_WP, 5, 6)
    a(f"v_mul_u32_u24 v7, 80, v3\nv_add_u32 v7, {L_MB}, v7")
    l = if_wave("ge", 4)
    for m in range(10):
        a(f"v_lshlrev_b32 {R(X1+2*m)}, 16, {R(PM+m)}\nv_and_b32 {R(X1+2*m+1)}, 0xffff0000, {R(PM+m)}")
    a(f"{l}:")
    a.barrier()
    stamp("Bp")
    for x in ocheck(0): a(x)
    obranch(0)
    owr = [f"ds_write_b128 v5, {R(AF1[j],4)} offset:{1024*j}" for j in range(5)]
    for s in range(5): ostep(s)
    ostep(5, ["", "", ""] + owr[:2])
    lh = a.label("helper2")
    if_s(sW, "ge", 4, lh)

    GA, AV, PP = 128, 148, 168
    P1, P2 = 64, AF1
    ostep(6, owr[2:] + [f"ds_read_b128 {R(GA+4*j,4)}, v7 offset:{16*j}" for j in range(5)])
    ostep(7, [f"ds_read_b128 {R(AV+4*j,4)}, v7 offset:{1280+16*j}" for j in range(5)])
    a(f"v_mov_b32 v5, {L_MB+1600}\ns_waitcnt lgkmcnt(4)\ns_barrier")
    ostep(8, ["ds_read_b128 v[192:195], v5"] + [f"ds_read_b128 {R(r,4)}, v6 offset:{5120 + 1024*n}" for n, r in enumerate([PP+4*j for j in range(5)] + [P1+4*j for j in range(5)])])
    ostep(9)
    a("s_waitcnt lgkmcnt(0)\ns_barrier")
    for j in range(5): a(f"ds_read_b128 {R(P2[j],4)}, v6 offset:{1024*j}")
    for m in range(10): a(f"v_pk_add_f32 {R(PP+2*m,2)}, {R(PP+2*m,2)}, {R(P1+2*m,2)}")
    for m in range(10): a(f"v_pk_add_f32 {R(ACC+2*m,2)}, {R(ACC+2*m,2)}, {R(PP+2*m,2)}")
    stamp("gemm2")
    a(f"""s_lshl_b32 {S(sT)}, {S(sTG)}, 13
          s_lshl_b32 {S(sT+1)}, {S(sKQ)}, 8
          s_add_u32 {S(sT)}, {S(sT)}, {S(sT+1)}
          s_add_u32 {S(sT)}, {S(sT)}, {W_STATS}
          s_lshl_b32 {S(sT+1)}, {S(sHG)}, 10
          s_add_u32 {S(sT+1)}, {S(sT+1)}, {S(sT)}
          s_add_u32 {S(sT+2)}, {S(sT)}, 4096
          s_mov_b32 vcc_lo, 0xaaaaaaaa
          s_mov_b32 vcc_hi, 0xaaaaaaaa
          s_waitcnt lgkmcnt(0)
          v_cndmask_b32 v67, v194, v193, vcc""")
    for m in range(10): a(f"v_pk_add_f32 {R(ACC+2*m,2)}, {R(ACC+2*m,2)}, {R(P2[m//2]+2*(m&1),2)}")
    for m in range(10): a(f"v_pk_fma_f32 {R(X1+2*m,2)}, {R(ACC+2*m,2)}, {R(GA+2*m,2)}, {R(X1+2*m,2)}")
    a(f"""v_pk_add_f32 v[72:73], {R(X1,2)}, {R(X1+2,2)}
          v_pk_mul_f32 v[74:75], {R(X1,2)}, {R(X1,2)}
          v_pk_mul_f32 v[76:77], {R(X1,2)}, {R(AV,2)}""")
    for m in range(1, 10):
        if m > 1: a(f"v_pk_add_f32 v[72:73], v[72:73], {R(X1+2*m,2)}")
        a(f"v_pk_fma_f32 v[74:75], {R(X1+2*m,2)}, {R(X1+2*m,2)}, v[74:75]\nv_pk_fma_f32 v[76:77], {R(X1+2*m,2)}, {R(AV+2*m,2)}, v[76:77]")
    a("v_add_f32 v64, v72, v73\nv_add_f32 v65, v74, v75\nv_add_f32 v66, v76, v77")
    def allreduce_g(regs, tmp):
        for sw in ("32", "16"):
            for k, r in enumerate(regs): a(f"v_mov_b32 {R(tmp+k)}, {R(r)}")
            a("s_nop 1")
            for k, r in enumerate(regs): a(f"v_permlane{sw}_swap_b32 {R(r)}, {R(tmp+k)}")
            for k, r in enumerate(regs): a(f"v_add_f32 {R(r)}, {R(r)}, {R(tmp+k)}")
    allreduce_g([64, 65, 66], 72)
    a("s_mov_b64 exec, 0xffff")
    pub([f"buffer_store_dwordx4 v[64:67], {R(vOL)}, {S(WS,4)}, {S(sT+1)} offen"])
    a("s_mov_b64 exec, -1")
    stamp("stats_pub")
    def statloads():
        a(f"""buffer_load_dwordx4 v[72:75], {R(vOL)}, {S(WS,4)}, {S(sT)} offen sc1
              buffer_load_dwordx4 v[76:79], {R(vOL)}, {S(WS,4)}, {S(sT+2)} offen sc1""")
    fimage()
    statloads()
    a("s_waitcnt lgkmcnt(0)")
    G2, SBV, GB = 128, 148, 168
    for j in range(5): a(f"ds_read_b128 {R(G2+4*j,4)}, v7 offset:{640+16*j}")
    for j in range(5): a(f"ds_read_b128 {R(SBV+4*j,4)}, v7 offset:{320+16*j}")
    for j in range(5): a(f"ds_read_b128 {R(GB+4*j,4)}, v7 offset:{960+16*j}")
    a(f"""s_lshl_b32 {S(sT+3)}, {S(sTG)}, 6
          s_lshl_b32 {S(sT+4)}, {S(sKQ)}, 4
          s_add_u32 {S(sT+3)}, {S(sT+3)}, {S(sT+4)}
          s_sub_u32 {S(sT+3)}, 2047, {S(sT+3)}
          v_sub_u32 v80, {S(sT+3)}, v2
          s_lshl_b32 {S(sT+4)}, {S(sKQ)}, 2
          s_add_u32 {S(sT+4)}, {S(sT+4)}, {L_KEYS}
          v_mov_b32 v81, {S(sT+4)}
          v_mov_b32 v82, {L_WIN}
          v_mul_u32_u24 v83, 40, v3""")
    a("s_waitcnt vmcnt(0)")
    poisoncheck(range(72, 80), 64)
    a("s_cbranch_vccnz L_stretry\nL_stok:")
    stamp("H4")
    a("v_pk_add_f32 v[64:65], v[72:73], v[76:77]\nv_pk_add_f32 v[66:67], v[74:75], v[78:79]")
    allreduce_g([64, 65, 66, 67], 72)
    a(f"""v_mul_f32 v64, {hex(fbits(1/640))}, v64
          v_mul_f32 v65, {hex(fbits(1/640))}, v65
          v_mov_b32_dpp v68, v67 quad_perm:[0,0,2,2] row_mask:0xf bank_mask:0xf
          v_mov_b32_dpp v69, v67 quad_perm:[1,1,3,3] row_mask:0xf bank_mask:0xf
          v_fma_f32 v65, -v64, v64, v65
          v_max_f32 v65, 0, v65
          v_add_f32 v65, {hex(fbits(1e-5))}, v65
          v_rsq_f32 v70, v65
          v_fma_f32 v66, -v64, v68, v66
          v_fma_f32 v66, v66, v70, v69
          v_mul_f32 v64, v64, v70
          v_ashrrev_i32 v67, 31, v66
          v_or_b32 v67, 0x80000000, v67
          v_xor_b32 v66, v66, v67
          v_and_b32 v66, 0xfffff800, v66
          v_or_b32 v66, v66, v80
          v_min_u32 v66, -2, v66
          s_nop 1
          v_max_u32_dpp v67, v66, v66 row_ror:8 row_mask:0xf bank_mask:0xf
          s_nop 1
          v_max_u32_dpp v67, v67, v67 row_ror:4 row_mask:0xf bank_mask:0xf
          s_nop 1
          v_max_u32_dpp v67, v67, v67 row_ror:2 row_mask:0xf bank_mask:0xf
          s_nop 1
          v_max_u32_dpp v67, v67, v67 row_ror:1 row_mask:0xf bank_mask:0xf
          s_mov_b64 exec, 1
          ds_write_b32 v81, v67
          s_mov_b64 exec, -1
          s_waitcnt lgkmcnt(0)
          s_barrier
          ds_read_b128 v[72:75], v82 offset:{L_KEYS-L_WIN}""")
    H2, PK, PK2 = 84, 104, 114
    for m in range(10): a(f"v_pk_fma_f32 {R(H2+2*m,2)}, {R(X1+2*m,2)}, v[70:71], v[64:65] op_sel_hi:[1,0,0] neg_lo:[0,0,1] neg_hi:[0,0,1]")
    for m in range(10): a(f"v_pk_fma_f32 {R(H2+2*m,2)}, {R(H2+2*m,2)}, {R(G2+2*m,2)}, {R(SBV+2*m,2)}")
    a(f"""s_waitcnt lgkmcnt(0)
          v_max_u32 v72, v72, v73
          v_max3_u32 v72, v72, v74, v75
          v_cmp_eq_u32 {S(sEX,2)}, v66, v72""")
    for m in range(10): a(f"v_cvt_pk_bf16_f32 {R(PK+m)}, {R(H2+2*m)}, {R(H2+2*m+1)}")
    l = a.label("norow")
    a(f"""s_lshl_b32 {S(sT+2)}, {S(sTG)}, 11
          s_lshl_b32 {S(sT+3)}, {S(sHG)}, 8
          s_add_u32 {S(sT+2)}, {S(sT+2)}, {S(sT+3)}
          s_add_u32 {S(sT+2)}, {S(sT+2)}, {W_H2ROW}
          s_cmp_eq_u64 {S(sEX,2)}, 0
          s_cbranch_scc1 {l}
          s_mov_b64 exec, {S(sEX,2)}
          buffer_store_dwordx4 {R(PK,4)}, v83, {S(WS,4)}, {S(sT+2)} offen sc1
          buffer_store_dwordx4 {R(PK+4,4)}, v83, {S(WS,4)}, {S(sT+2)} offen offset:16 sc1
          buffer_store_dwordx2 {R(PK+8,2)}, v83, {S(WS,4)}, {S(sT+2)} offen offset:32 sc1
          s_mov_b64 exec, -1
          {l}:""")
    stamp("row_pub")
    for m in range(10): a(f"v_pk_fma_f32 {R(X1+2*m,2)}, {R(H2+2*m,2)}, {R(GB+2*m,2)}, {R(X1+2*m,2)}")
    for m in range(10): a(f"v_cvt_pk_bf16_f32 {R(PK2+m)}, {R(X1+2*m)}, {R(X1+2*m+1)}")
    def outstore():
        a(f"""buffer_store_dwordx4 {R(PK2,4)}, {R(vXO)}, {S(OUT,4)}, {S(sXO)} offen {cfg.outsc}
              buffer_store_dwordx4 {R(PK2+4,4)}, {R(vXO)}, {S(OUT,4)}, {S(sXO)} offen offset:16 {cfg.outsc}
              buffer_store_dwordx2 {R(PK2+8,2)}, {R(vXO)}, {S(OUT,4)}, {S(sXO)} offen offset:32 {cfg.outsc}""")
    a(f"s_andn2_b64 exec, exec, {S(sEX,2)}")
    outstore()
    lw = a.label("winner"); lt = a.label("tail")
    stamp("out_iss")
    if cfg.diag == "at:out_ack": a("s_waitcnt vmcnt(0)")
    stamp("out_ack")
    a(f"""s_mov_b64 exec, -1
          s_barrier
          s_cmp_eq_u64 {S(sEX,2)}, 0
          s_cbranch_scc1 {lt}
          ds_read_b32 v73, v82
          s_waitcnt lgkmcnt(0)
          v_cmp_eq_u32 vcc, v73, v72
          s_mov_b64 exec, {S(sEX,2)}
          s_cbranch_vccnz {lw}""")
    outstore()
    a(f"""s_mov_b64 exec, -1
          s_branch {lt}
          {lw}:
          v_lshlrev_b32 v83, 1, v83
          s_lshl_b32 {S(sT+2)}, {S(sHG)}, 10
          s_add_u32 {S(sT+2)}, {S(sT+2)}, {W_BASE}""")
    for j in range(5):
        a(f"buffer_store_dwordx4 {R(X1+4*j,4)}, v83, {S(WS,4)}, {S(sT+2)} offen offset:{16*j} sc1")
        a(f"buffer_store_dwordx4 {R(GB+4*j,4)}, v83, {S(WS,4)}, {S(sT+2)} offen offset:{512+16*j} sc1")
    a(f"s_mov_b64 exec, -1\ns_branch {lt}")

    a(f"{lh}:")
    ostep(6, owr[2:]); ostep(7); ostep(8); ostep(9)
    a("s_waitcnt lgkmcnt(0)\ns_barrier\ns_nop 1")
    for j in range(5): a(f"ds_write_b128 v6, {R(ACC+4*j,4)} offset:{1024*j}")
    a("s_setprio 0")
    stamp("hgemm")
    a.barrier()
    stamp("Bkh")
    fimage()
    FW = 128
    l = a.label("x")
    a(f"""{l}:
          v_mov_b32 v210, {L_WIN}
          v_and_b32 v211, 31, v1
          v_lshlrev_b32 v211, 7, v211
          v_lshlrev_b32 v208, 4, v3
          v_lshrrev_b32 v209, 5, v1
          v_mul_u32_u24 v209, 96, v209
          v_add_u32 v209, v209, v208
          s_lshl_b32 {S(sT+1)}, {S(sTG)}, 7
          s_add_u32 {S(sT+1)}, {S(sT+1)}, {W_CAND}
          s_mov_b32 {S(sT)}, {W_CAND}""")
    a.barrier()
    l = if_wave("eq", 0)
    l2 = if_s(sHG, "eq", 0)
    a(f"""ds_read_b128 v[212:215], v210 offset:{L_KEYS-L_WIN}
          s_waitcnt lgkmcnt(0)
          v_max_u32 v212, v212, v213
          v_max3_u32 v212, v212, v214, v215
          s_mov_b64 exec, 1
          buffer_store_dword v212, v211, {S(WS,4)}, {S(sT+1)} offen sc1
          s_mov_b64 exec, -1
          {l2}:""")
    stamp("cand_pub")
    l2 = if_s(sB, "lt", 216)
    a(f"""v_bfe_u32 v8, v1, 2, 2
          v_lshl_add_u32 v8, v3, 3, v8
          v_lshlrev_b32 v8, 4, v8
          v_and_b32 v9, 1, v1
          v_lshl_add_u32 v8, v9, 3, v8
          v_bfe_u32 v9, v1, 1, 1
          v_mul_u32_u24 v9, {L_FU-L_FG}, v9
          v_add_u32 v8, v8, v9""")
    for s in range(20):
        for u in range(2): a(f"ds_read_b64_tr_b16 {R(FW+4*s+2*u,2)}, v8 offset:{L_FG + 512*s + 64*u}")
        if s % 6 == 5: a("s_waitcnt lgkmcnt(2)")
    a(f"{l2}:")
    if cfg.sl5: a(f"s_sleep {cfg.sl5}")
    sp = spin_begin()
    a(f"buffer_load_dword v212, v211, {S(WS,4)}, {S(sT)} offen sc1\ns_waitcnt vmcnt(0)")
    poisoncheck([212], 213)
    spin_end(sp)
    for rot in (8, 4, 2, 1):
        a(f"v_max_u32_dpp v212, v212, v212 row_ror:{rot} row_mask:0xf bank_mask:0xf\ns_nop 1")
    a(f"""v_readlane_b32 {S(sT)}, v212, 0
          v_readlane_b32 {S(sT+1)}, v212, 16
          s_nop 3
          s_max_u32 {S(sKEY)}, {S(sT)}, {S(sT+1)}
          v_mov_b32 v213, {S(sKEY)}
          ds_write_b32 v210, v213""")
    stamp("H5")
    if_s(sB, "lt", 216, l)
    a.c("FFN gate/up for 8 hidden units on the selected token")
    a(f"""s_and_b32 {S(sT)}, {S(sKEY)}, 2047
          s_sub_u32 {S(sT)}, 2047, {S(sT)}
          s_lshr_b32 {S(sT)}, {S(sT)}, 6
          s_lshl_b32 {S(sT)}, {S(sT)}, 11
          s_add_u32 {S(sT)}, {S(sT)}, {W_H2ROW}""")
    HF = 8
    def hloads():
        for s in range(20):
            c0 = 4 * s
            off = (c0 // 10) * 256 + (c0 % 10) * 16
            a(f"buffer_load_dwordx4 {R(HF+4*s,4)}, v{209 if c0 % 10 == 8 else 208}, {S(WS,4)}, {S(sT)} offen offset:{off} sc1")
    hloads()
    a(f"s_waitcnt lgkmcnt(0)\ns_barrier\ns_mov_b32 {S(sSPIN)}, 0\nL_f1go:")
    for s in range(20):
        a(f"s_waitcnt vmcnt({19-s})")
        a(f"v_mfma_f32_16x16x32_bf16 v[212:215], {R(FW+4*s,4)}, {R(HF+4*s,4)}, {'0' if s == 0 else 'v[212:215]'}")
        if s == 0: a(f"v_max_u32 v210, {R(HF)}, {R(HF+1)}")
        else: a(f"v_max3_u32 v210, v210, {R(HF+4*s)}, {R(HF+4*s+1)}")
        a(f"v_max3_u32 v210, v210, {R(HF+4*s+2)}, {R(HF+4*s+3)}")
    a("v_cmp_eq_u32 vcc, -1, v210\ns_cbranch_vccnz L_f1retry\nL_f1ok:\ns_nop 4")
    for j in range(4): a(f"v_mov_b32 v{216+j}, v{212+j}")
    a("s_nop 1")
    for j in range(4): a(f"v_permlane32_swap_b32 v{212+j}, v{216+j}")
    for j in range(4): a(f"v_mul_f32 v{220+j}, {hex(fbits(-LOG2E))}, v{212+j}")
    for j in range(4): a(f"v_exp_f32 v{220+j}, v{220+j}")
    for j in range(4): a(f"v_add_f32 v{220+j}, 1.0, v{220+j}")
    for j in range(4): a(f"v_rcp_f32 v{220+j}, v{220+j}")
    for j in range(4): a(f"v_mul_f32 v{212+j}, v{212+j}, v{216+j}")
    for j in range(4): a(f"v_mul_f32 v{212+j}, v{212+j}, v{220+j}")
    a(f"""v_cvt_pk_bf16_f32 v216, v212, v213
          v_cvt_pk_bf16_f32 v217, v214, v215
          s_mul_i32 {S(sT)}, {S(sFROLE)}, {ASTR}
          s_add_u32 {S(sT)}, {S(sT)}, {W_ACT}
          v_lshlrev_b32 v208, 3, v3
          s_mov_b64 exec, 0x10001
          buffer_store_dwordx2 v[216:217], v208, {S(WS,4)}, {S(sT)} offen sc1
          s_mov_b64 exec, -1""")
    stamp("act_pub")
    a(f"s_branch L_fin\n{l}:")
    a.barrier()

    a(f"{lt}:")
    if cfg.wb:
        l = if_wave("eq", 1)
        if_s(sB, "lt", cfg.wb, l)
        a(f"buffer_wbl2 sc1\n{l}:")
    a(f"""s_cmp_ge_u32 {S(sB)}, 216
          s_cbranch_scc0 L_fin
          s_mul_i32 {S(sT)}, {S(sW)}, 7168
          v_add_u32 v64, {S(sT)}, {R(vK16)}""")
    l = if_wave("eq", 7)
    for i in range(8): a(f"v_mov_b32 {R(FR+20+i)}, 0")
    a(f"{l}:")
    for k in range(7): a(f"ds_write_b128 v64, {R(FR+4*k,4)} offset:{1024*k}")
    a(f"""v_bfe_u32 v65, v1, 2, 2
          v_lshl_add_u32 v65, v3, 3, v65
          v_lshlrev_b32 v65, 5, v65
          v_and_b32 v66, 3, v1
          v_lshl_add_u32 v65, v66, 3, v65
          v_add_u32 v65, {S(sT)}, v65
          s_waitcnt lgkmcnt(0)""")
    DW, AF = 192, 220
    for k in range(7):
        for u in range(2): a(f"ds_read_b64_tr_b16 {R(DW+4*k+2*u,2)}, v65 offset:{1024*k + 128*u}")
    a(f"""v_mul_u32_u24 v66, {ASTR}, v3
          v_lshlrev_b32 v67, 2, v2
          s_mul_i32 {S(sT)}, {S(sW)}, {7*4*ASTR}
          s_add_u32 {S(sT)}, {S(sT)}, {W_ACT}
          s_cmp_eq_u32 {S(sW)}, 7
          s_cselect_b32 {S(sT+1)}, {W_ACT}, {S(sT)}
          s_and_b32 {S(sT+2)}, {S(sB)}, 7
          s_lshl_b32 {S(sT+2)}, {S(sT+2)}, 10
          s_lshr_b32 {S(sT+3)}, {S(sB)}, 3
          s_sub_u32 {S(sT+3)}, {S(sT+3)}, 27
          s_lshl_b32 {S(sT+3)}, {S(sT+3)}, 6
          s_add_u32 {S(sT+2)}, {S(sT+2)}, {S(sT+3)}
          s_add_u32 {S(sT+2)}, {S(sT+2)}, {W_BASE}
          v_mov_b32 v68, 0
          v_mov_b32 v69, 0""")
    if cfg.sl6: a(f"s_sleep {cfg.sl6}")
    a("s_waitcnt lgkmcnt(0)")
    sp = spin_begin()
    for k in range(7):
        a(f"buffer_load_dwordx4 {R(AF+4*k,4)}, v66, {S(WS,4)}, {S(sT + (1 if k >= 5 else 0))} offen offset:{4*ASTR*k} sc1")
    l = if_wave("eq", 0)
    a(f"""buffer_load_dword v68, v67, {S(WS,4)}, {S(sT+2)} offen sc1
          buffer_load_dword v69, v67, {S(WS,4)}, {S(sT+2)} offen offset:512 sc1
          {l}:
          s_waitcnt vmcnt(0)""")
    poisoncheck(list(range(AF, AF + 28)) + [68, 69], 70)
    spin_end(sp)
    stamp("H6")
    for k in range(7):
        a(f"v_mfma_f32_16x16x32_bf16 v[72:75], {R(DW+4*k,4)}, {R(AF+4*k,4)}, {'0' if k == 0 else 'v[72:75]'}")
    a(f"""s_lshl_b32 {S(sT)}, {S(sW)}, 6
          s_add_u32 {S(sT)}, {S(sT)}, {L_RED}
          v_lshl_add_u32 v64, v3, 4, {S(sT)}
          s_mov_b32 exec_lo, 0x10001
          s_mov_b32 exec_hi, 0x10001
          s_nop 3
          ds_write_b128 v64, v[72:75]
          s_mov_b64 exec, -1""")
    l = if_wave("eq", 0)
    a(f"""s_and_b32 {S(sT+2)}, {S(sKEY)}, 0xfffff800
          s_not_b32 {S(sT+3)}, {S(sT+2)}
          s_xor_b32 {S(sT+4)}, {S(sT+2)}, 0x80000000
          s_cmp_lt_i32 {S(sT+2)}, 0
          s_cselect_b32 {S(sT+2)}, {S(sT+4)}, {S(sT+3)}
          v_mov_b32 v70, {hex(fbits(-LOG2E))}
          v_mul_f32 v70, {S(sT+2)}, v70
          v_exp_f32 v70, v70
          s_and_b32 {S(sT)}, {S(sKEY)}, 2047
          v_add_f32 v70, 1.0, v70
          v_rcp_f32 v70, v70
          s_sub_u32 {S(sT)}, 2047, {S(sT)}
          v_mul_f32 v69, v69, v70
          s_mul_i32 {S(sT)}, {S(sT)}, 1280
          s_lshl_b32 {S(sT+1)}, {S(sFROLE)}, 5
          s_add_u32 {S(sT)}, {S(sT)}, {S(sT+1)}
          v_add_u32 v65, {L_RED}, v67
          v_lshlrev_b32 v66, 1, v2
          {l}:""")
    a.barrier()
    if_s(sW, "eq", 0, "L_fin")
    for k in range(8): a(f"ds_read_b32 v{76+k}, v65 offset:{64*k}")
    a(f"""s_waitcnt lgkmcnt(0)
          v_add_f32 v76, v76, v77
          v_add_f32 v78, v78, v79
          v_add_f32 v80, v80, v81
          v_add_f32 v82, v82, v83
          v_add_f32 v76, v76, v78
          v_add_f32 v80, v80, v82
          v_add_f32 v76, v76, v80
          v_fma_f32 v68, v76, v69, v68
          v_cvt_pk_bf16_f32 v68, v68, v68
          s_mov_b64 exec, 0xffff
          buffer_store_short v68, v66, {S(OUT,4)}, {S(sT)} offen
          s_mov_b64 exec, -1""")
    a("L_fin:")
    if cfg.diag:
        stamp("fin")
        if_s(sB, "ge", 216, "L_fin2")
        if_s(sW, "eq", cfg.dw, "L_fin2")
        a(f"""s_mov_b32 {S(sT)}, {W_DBG}
              buffer_load_dwordx4 v[64:67], {R(vK16)}, {S(WS,4)}, {S(sT)} offen sc1
              s_memrealtime s[52:53]
              s_waitcnt vmcnt(0) lgkmcnt(0)""")
        for k in range(4): a(f"v_sub_u32 v{64+k}, s52, v{64+k}")
        a("v_max_u32 v68, v64, v65\nv_max3_u32 v68, v68, v66, v67\nv_min_u32 v69, v64, v65\nv_min3_u32 v69, v69, v66, v67\ns_mov_b32 s54, 0\ns_mov_b32 s55, -1\ns_nop 1")
        for ln in range(0, 64):
            a(f"v_readlane_b32 s56, v68, {ln}\nv_readlane_b32 s57, v69, {ln}\ns_nop 1\ns_max_u32 s54, s54, s56\ns_min_u32 s55, s55, s57")
        if cfg.diag == "skew": a("s_sub_u32 s54, s54, s55\ns_mul_i32 s54, s54, 10")
        if cfg.diag == "zero": a("s_mov_b32 s54, 0")
        if cfg.diag == "fast": a(f"s_mul_i32 s54, {S(sFAST)}, 1000")
        if cfg.diag.startswith("at:"): a("s_sub_u32 s56, s52, s100\ns_sub_u32 s54, s54, s56")
        a("""s_min_u32 s54, s54, 20000
             s_add_u32 s54, s54, 300
             L_diag:
             s_memrealtime s[56:57]
             s_waitcnt lgkmcnt(0)
             s_sub_u32 s56, s56, s52
             s_cmp_lt_u32 s56, s54
             s_cbranch_scc1 L_diag
             L_fin2:""")
    if cfg.stamps:
        stamp("end")
        a(f"""s_lshl_b32 {S(sT)}, {S(sB)}, 3
              s_add_u32 {S(sT)}, {S(sT)}, {S(sW)}
              s_lshl_b32 {S(sT)}, {S(sT)}, 8
              s_add_u32 {S(sT)}, {S(sT)}, {W_DBG}
              v_lshlrev_b32 v2, 2, v1
              buffer_store_dword v0, v2, {S(WS,4)}, {S(sT)} offen""")
        if cfg.dbgout:
            a(f"""s_cmp_eq_u32 {S(sB)}, 100
                  s_cbranch_scc0 L_nodbg
                  s_cmp_eq_u32 {S(sW)}, 0
                  s_cbranch_scc0 L_nodbg
                  s_load_dwordx2 {S(C,2)}, s[0:1], 104
                  s_mov_b32 {S(C+2)}, 64
                  s_mov_b32 {S(C+3)}, 0x20000
                  v_readlane_b32 {S(sT)}, v0, 0
                  s_waitcnt lgkmcnt(0)
                  s_nop 1
                  v_subrev_u32 v0, {S(sT)}, v0
                  buffer_store_dword v0, v2, {S(C,4)}, 0 offen
                  L_nodbg:""")
    a("s_endpgm")

    for s, lr, lb in retry:
        a(f"{lr}:")
        sp = spin_begin()
        oload(s)
        a("s_waitcnt vmcnt(0)")
        poisoncheck(range(OF+4*s, OF+4*s+4), 63)
        spin_end(sp)
        for s2 in range(s + 1, min(9, s - 1 + LA) + 1): oload(s2)
        a(f"s_branch {lb}")
    a("L_hretry:")
    sp = spin_begin()
    hloads_q()
    a("s_waitcnt vmcnt(0)")
    for st in range(10):
        for x in hsum(st): a(x)
    hcmp()
    spin_end(sp)
    a("s_waitcnt lgkmcnt(0)")
    for st in range(8): qstep(st, qfirst if st == 7 else ())
    a("s_branch L_hback")
    a("L_h1retry:")
    sp = spin_begin()
    if cfg.sl1r: a(f"s_sleep {cfg.sl1r}")
    h1loads()
    a("s_waitcnt vmcnt(0)")
    tagcheck(PH, 27)
    spin_end(sp)
    a("s_branch L_h1ok")
    a("L_h2retry:")
    sp = spin_begin()
    h2loads()
    h2check()
    spin_end(sp)
    a("s_branch L_h2ok\nL_stretry:")
    sp = spin_begin()
    statloads()
    a("s_waitcnt vmcnt(0)")
    poisoncheck(range(72, 80), 64)
    spin_end(sp)
    a("s_branch L_stok\nL_pfretry:")
    sp = spin_begin()
    a(pf_load() + "\ns_waitcnt vmcnt(0)")
    pf_check()
    spin_end(sp)
    a("s_branch L_pfok\nL_pmretry:")
    sp = spin_begin()
    pm_loads()
    a("s_waitcnt vmcnt(0)")
    tagcheck(PM, 128)
    spin_end(sp)
    a(f"""s_branch L_pmok
          L_f1retry:
          s_add_u32 {S(sSPIN)}, {S(sSPIN)}, 1
          s_cmp_lt_u32 {S(sSPIN)}, {SPIN_MAX}
          s_cbranch_scc0 L_f1ok""")
    hloads()
    a("s_branch L_f1go")

    a("L_slow:")
    M = 150
    a(f"v_mov_b32 {R(M)}, 0xff800000")
    for ps in range(2):
        lp = a.label("slowloop")
        if ps == 1:
            a(f"""v_mov_b32 {R(M+1)}, {R(M)}
                  s_nop 1
                  v_permlane32_swap_b32 {R(M)}, {R(M+1)}
                  v_max_f32 {R(M)}, {R(M)}, {R(M+1)}""")
            for i in range(16): a(f"v_mov_b32 {R(O_+i)}, 0")
        a(f"s_mov_b32 {S(sT+2)}, {W_KV}\n{lp}:")
        a(f"buffer_load_dwordx2 v[164:165], {R(vK8)}, {S(WS,4)}, {S(sT+2)} offen offset:2560 sc1")
        for hb in range(2):
            a(f"buffer_load_dwordx4 v[152:155], {R(vK16)}, {S(WS,4)}, {S(sT+2)} offen sc1")
            if ps == 1:
                a(f"""buffer_load_dwordx4 v[156:159], {R(vV)}, {S(WS,4)}, {S(sT+2)} offen offset:1024 sc1
                      buffer_load_dwordx4 v[160:163], {R(vV)}, {S(WS,4)}, {S(sT+2)} offen offset:1792 sc1""")
            a(f"""s_waitcnt vmcnt(0)
                  v_mfma_f32_32x32x4_2b_bf16 v[192:223], v[164:165], {R(QB,2)}, 0 cbsz:1 abid:{hb}
                  s_nop 15
                  s_nop 3
                  v_mfma_f32_32x32x16_bf16 v[192:207], v[152:155], {R(QA,4)}, v[192:207]
                  s_nop 15""")
            if ps == 0:
                for i in range(0, 16, 2): a(f"v_max3_f32 {R(M)}, {R(M)}, v{192+i}, v{193+i}")
            else:
                for i in range(16): a(f"v_sub_f32 v{192+i}, v{192+i}, {R(M)}")
                for i in range(16): a(f"v_exp_f32 v{192+i}, v{192+i}")
                a(f"""s_nop 2
                      v_smfmac_f32_32x32x32_bf16 {R(O_,16)}, v[156:159], v[192:199], {R(IDX)}
                      v_smfmac_f32_32x32x32_bf16 {R(O_,16)}, v[160:163], v[200:207], {R(IDX)}
                      s_nop 15""")
            a(f"s_add_u32 {S(sT+2)}, {S(sT+2)}, {KVT}")
        a(f"s_cmp_lt_u32 {S(sT+2)}, {W_KV + 64*KVT}\ns_cbranch_scc1 {lp}")
    a("s_branch L_slow_done")
    a("L_end:\ns_endpgm")
    return a.text()

def wrap(body):
    ref = open(f"cdna_kernels/{NAME}.s.ref").read().split("\n")
    head = [l for l in ref if l.startswith(";") and "@launch" not in l]
    return "\n".join(head) + f"""
; @launch grid=(256,1,1) block=(512,1,1) lds=163840
.amdgcn_target "amdgcn-amd-amdhsa--gfx950"
.text
.globl {NAME}_kernel
.p2align 8
.type {NAME}_kernel,@function
{NAME}_kernel:
{body}.section .rodata,"a"
.p2align 6
.amdhsa_kernel {NAME}_kernel
  .amdhsa_next_free_vgpr 256
  .amdhsa_next_free_sgpr 102
  .amdhsa_accum_offset 256
  .amdhsa_group_segment_fixed_size 0
  .amdhsa_kernarg_size 120
  .amdhsa_user_sgpr_count 2
  .amdhsa_user_sgpr_kernarg_segment_ptr 1
  .amdhsa_system_sgpr_workgroup_id_x 1
.end_amdhsa_kernel
"""

if __name__ == "__main__":
    import json
    cfg = Cfg()
    out = f"cdna_kernels/{NAME}.s"
    for arg in sys.argv[1:]:
        k, v = arg.split("=", 1)
        if k == "out": out = v
        else: setattr(cfg, k, json.loads(v))
    open(out, "w").write(wrap(gen(cfg)))
    if cfg.stamps: json.dump(cfg.stamp_names, open(out + ".stamps", "w"))
```
